```python
import torch

def _softmax(x, axis=-1):
    return torch.softmax(x, dim=axis)
def _gelu(x):
    return torch.nn.functional.gelu(x, approximate="tanh")
def _silu(x):
    return torch.nn.functional.silu(x)
def _sigmoid(x):
    return torch.sigmoid(x)
def _layernorm(x, axis=-1, eps=1e-5):
    m = x.mean(dim=axis, keepdim=True)
    v = x.var(dim=axis, keepdim=True, unbiased=False)
    return (x - m) / torch.sqrt(v + eps)
def _scatter_add(tgt, idx, src, axis=0):
    return tgt.clone().index_add_(axis, idx, src)
def _segment_sum(src, seg, n):
    out = torch.zeros((n,) + src.shape[1:], dtype=src.dtype)
    return out.index_add_(0, seg, src)
def _pad(x, pw):
    flat = tuple(v for pair in reversed(pw) for v in pair)
    return torch.nn.functional.pad(x, flat)

kernel_name = 'interleave_layers__sliding_local_dilated__dense_activation_relu__prompt'

def setup_inputs():

    _w = (lambda a: (lambda t: t.to(torch.bfloat16) if t.is_floating_point() else t)(torch.as_tensor(a)))
    def _A_setup():
        B, S, D = 1, 2048, 512
        return {
            "x": _w((lambda *s: torch.randn(*s, dtype=torch.bfloat16) * 0.05)(B, S, D)),
            "wqkv": _w((lambda *s: torch.randn(*s, dtype=torch.bfloat16) * 0.05)(D, 3 * D)),
            "wo": _w((lambda *s: torch.randn(*s, dtype=torch.bfloat16) * 0.05)(D, D)),
        }
    _A_in = _A_setup()

    def _B_setup():
        B, S, D, Dff = 1, 2048, 512, 1376
        return {
            "x": _w((lambda *s: torch.randn(*s, dtype=torch.bfloat16) * 0.05)(B, S, D)),
            "w1": _w((lambda *s: torch.randn(*s, dtype=torch.bfloat16) * 0.05)(D, Dff)),
            "w2": _w((lambda *s: torch.randn(*s, dtype=torch.bfloat16) * 0.05)(Dff, D)),
        }
    _B_in = _B_setup()

    return {
        "A_x": _A_in["x"],
        "A_wqkv": _A_in["wqkv"],
        "A_wo": _A_in["wo"],
        "B_x": _B_in["x"],
        "B_w1": _B_in["w1"],
        "B_w2": _B_in["w2"],
    }

def reference(A_x, A_wqkv, A_wo, B_x, B_w1, B_w2):
    def _A_ref(x, wqkv, wo):
        B, S, D = x.shape
        H = 32; Dh = D // H
        W, dil = 8, 2
        qkv = (lambda x, *d: x.permute(*d))((x @ wqkv).reshape(B, S, 3, H, Dh), 2, 0, 3, 1, 4)
        q, k, v = qkv[0], qkv[1], qkv[2]
        scale = Dh ** -0.5
        pos = torch.arange(S)
        off = torch.arange(W) * dil
        idx = pos[:, None] - off[None, :]
        mask = idx >= 0
        idx_c = torch.where(mask, idx, 0).reshape(-1)
        kg = k[:, :, idx_c, :].reshape(B, H, S, W, Dh)
        vg = v[:, :, idx_c, :].reshape(B, H, S, W, Dh)
        logits = torch.einsum("bhsd,bhswd->bhsw", q, kg) * scale
        logits = torch.where(mask[None, None, :, :], logits, -1e9)
        attn = _softmax(logits, axis=-1)
        o = torch.einsum("bhsw,bhswd->bhsd", attn, vg)
        return (lambda x, *d: x.permute(*d))(o, 0, 2, 1, 3).reshape(B, S, D) @ wo

    def _B_ref(x, w1, w2):
        h = torch.einsum("bsd,df->bsf", x, w1)
        zero = torch.zeros_like(h)
        h = torch.maximum(h, zero)
        return torch.einsum("bsf,fd->bsd", h, w2)

    x = A_x
    x = x + _A_ref(_layernorm(x, axis=-1), A_wqkv, A_wo)
    x = x + _B_ref(_layernorm(x, axis=-1), B_w1, B_w2)
    x = x + _A_ref(_layernorm(x, axis=-1), A_wqkv, A_wo)
    x = x + _B_ref(_layernorm(x, axis=-1), B_w1, B_w2)
    return x
```

```python
import re

REG = re.compile(r'\b([vas])(\d+)\b|\b([vas])\[(\d+):(\d+)\]')
def regs_of(op):
    op = op.strip()
    out = []
    if op in ('vcc',): return [('s', 'vcc')]
    if op in ('exec',): return [('s', 'exec')]
    if op == 'm0': return [('s', 'm0')]
    for m in REG.finditer(op):
        if m.group(1): out.append((m.group(1), int(m.group(2))))
        else: out += [(m.group(3), i) for i in range(int(m.group(4)), int(m.group(5)) + 1)]
    return out

TRANS = ('v_exp_f32', 'v_log_f32', 'v_rcp_f32', 'v_rsq_f32', 'v_sqrt_f32', 'v_sin_f32', 'v_cos_f32')

class Ins:
    def __init__(self, text):
        self.text = text
        t = text.split(';')[0].strip()
        p = t.split(None, 1)
        self.op = p[0]
        rest = p[1] if len(p) > 1 else ''
        ops = []; depth = 0; cur = ''
        for ch in rest:
            if ch in '[(': depth += 1
            if ch in '])': depth -= 1
            if ch == ',' and depth == 0: ops.append(cur.strip()); cur = ''
            else: cur += ch
        if cur.strip(): ops.append(cur.strip())
        self.mods = ''
        if ops:
            lp = ops[-1].split(None, 1)
            if len(lp) > 1: ops[-1] = lp[0]; self.mods = lp[1]
        self.ops = ops
        op = self.op
        self.is_mfma = op.startswith('v_mfma')
        self.is_valu = op.startswith('v_') and not self.is_mfma
        self.is_ds = op.startswith('ds_')
        self.is_vmem = op.startswith('buffer_') or op.startswith('global_')
        self.is_salu = op.startswith('s_')
        self.is_trans = op.replace('_e32', '').replace('_e64', '') in TRANS
        self.is_perm = op.startswith('v_permlane')
        self.is_dpp = '_dpp' in op or 'quad_perm' in self.mods or 'row_' in self.mods
        self.is_rdlane = op.startswith('v_readfirstlane') or op.startswith('v_readlane')
        self.is_ldsdma = self.is_vmem and (' lds' in ' ' + self.mods or '_lds_' in op)
        R = [regs_of(o) for o in ops]
        self.w = []; self.r = []; self.srcc = []; self.srcab = []
        self.wide_store = False
        if self.is_mfma:
            self.w = R[0]; self.srcab = R[1] + R[2]; self.srcc = R[3]; self.r = self.srcab + self.srcc
        elif self.is_valu:
            if self.is_perm: self.w = R[0] + R[1]; self.r = R[0] + R[1]
            else:
                self.w = R[0]; self.r = sum(R[1:], [])
                if op.startswith(('v_fmac', 'v_dot2c', 'v_pk_fmac', 'v_writelane')) or self.is_dpp: self.r += R[0]
                if op.startswith(('v_add_co', 'v_sub_co', 'v_addc_co')): self.w += R[1]
        elif self.is_ds:
            if op.startswith(('ds_read', 'ds_bpermute', 'ds_permute', 'ds_swizzle')): self.w = R[0]; self.r = sum(R[1:], [])
            else: self.r = sum(R, [])
        elif self.is_vmem:
            if self.is_ldsdma: self.r = sum(R, []) + [('s', 'm0')]
            elif '_load' in op: self.w = R[0]; self.r = sum(R[1:], [])
            else:
                self.r = sum(R, [])
                if 'atomic' in op and 'sc0' in self.mods: self.w = R[0]
                if 'x4' in op or 'x3' in op:
                    self.wide_store = True
                    self.sdata = R[0] if op.startswith('buffer_') else R[1]
        elif self.is_salu:
            if op.startswith(('s_cmp', 's_cbranch', 's_branch', 's_waitcnt', 's_barrier', 's_nop', 's_endpgm', 's_sleep', 's_setprio', 's_bitcmp')):
                self.r = sum(R, [])
            else:
                self.w = R[0] if R else []; self.r = sum(R[1:], [])
                if 'saveexec' in op: self.w = self.w + [('s', 'exec')]
        self.states = 1
        if op == 's_nop': self.states = int(ops[0]) + 1
        self.passes = 0
        if self.is_mfma: self.passes = 8 if '32x32' in op else 4

def need(p, c):
    n = 0
    pw = set(p.w); cw = set(c.w); cr = set(c.r)
    if p.is_mfma:
        big = {4: 8, 8: 12}[p.passes]
        if c.is_mfma:
            if pw & set(c.srcab): n = max(n, big)
            if pw & set(c.srcc):
                if p.w != c.srcc or p.passes != c.passes: n = max(n, big - 2)
            elif pw & cw: n = max(n, big)
        elif c.is_valu or c.is_ds or c.is_vmem:
            if pw & (cr | cw): n = max(n, big)
        if c.is_valu and set(p.srcc) & cw: n = max(n, {4: 3, 8: 7}[p.passes])
    if p.is_valu:
        vw = {x for x in pw if x[0] in 'va'}
        sw = {x for x in pw if x[0] == 's'}
        if c.is_mfma and vw & cr: n = max(n, 2)
        if c.is_perm and vw & cr: n = max(n, 2)
        if c.is_dpp and vw & cr: n = max(n, 2)
        if c.is_rdlane and vw & cr: n = max(n, 1)
        if p.is_trans and c.is_valu and not c.is_trans and vw & cr: n = max(n, 1)
        if p.is_trans and (c.is_vmem or c.is_ds) and vw & cr: n = max(n, 1)
        if sw & cr:
            if c.is_valu: n = max(n, 4 if c.op.startswith(('v_readlane', 'v_writelane')) else 2)
            if c.is_vmem: n = max(n, 5)
            if c.is_salu: n = max(n, 1)
        if p.op.startswith('v_dot') and (c.is_valu or c.is_mfma or c.is_vmem or c.is_ds) and vw & (cr | cw): n = max(n, 3)
    if p.is_salu and ('s', 'm0') in pw and c.is_ldsdma: n = max(n, 1)
    if p.wide_store and set(p.sdata) & cw: n = max(n, 2)
    return n

class Em:
    def __init__(self):
        self.l = []
        self.h = []
        self.uid = 0
        self.vm = []
        self.lg = []
        self.nins = 0
        self.nops = 0
    def raw(self, s): self.l.append(s)
    def __call__(self, s, tag=None, track=True):
        for line in s.split('\n'):
            line = line.strip()
            if not line: continue
            if line.startswith(';'): self.l.append('    ' + line); continue
            self.emit(line, tag, track)
    def emit(self, line, tag=None, track=True):
        c = Ins(line)
        dist = 0; pad = 0
        for p in reversed(self.h):
            n = need(p, c)
            if n > dist: pad = max(pad, n - dist)
            dist += p.states
            if dist >= 20: break
        if pad:
            self.nops += pad
            nop = Ins('s_nop %d' % (pad - 1))
            self.l.append('    s_nop %d' % (pad - 1)); self.h.append(nop)
        self.l.append('    ' + line)
        self.h.append(c); self.h = self.h[-24:]
        self.nins += 1
        if track:
            if c.is_vmem: self.vm.append(tag)
            if c.is_ds: self.lg.append(tag)
    def label(self, n):
        self.l.append(n + ':')
    def newlabel(self, p='L'):
        self.uid += 1
        return '%s_%d' % (p, self.uid)
    def flush_haz(self, n=12):
        self('s_nop %d' % (n - 1))
    def _cnt(self, q, tags):
        if not isinstance(tags, list): tags = [tags]
        last = -1
        for t in tags:
            idx = [i for i, x in enumerate(q) if x == t]
            if idx: last = max(last, idx[-1])
        if last < 0: return None
        return len(q) - 1 - last
    def wait(self, vm=None, lg=None):
        parts = []
        if vm is not None:
            n = 0 if vm == 'all' else self._cnt(self.vm, vm)
            if n is not None:
                n = min(n, 62); parts.append('vmcnt(%d)' % n)
                self.vm = self.vm[len(self.vm) - n:] if n else []
        if lg is not None:
            n = 0 if lg == 'all' else self._cnt(self.lg, lg)
            if n is not None:
                n = min(n, 14); parts.append('lgkmcnt(%d)' % n)
                self.lg = self.lg[len(self.lg) - n:] if n else []
        if parts: self('s_waitcnt ' + ' '.join(parts))
    def text(self): return '\n'.join(self.l) + '\n'

class Alloc:
    def __init__(self, kind, lo, hi):
        self.kind = kind; self.free = [True] * hi; self.hi = hi; self.maxused = 0
        for i in range(lo): self.free[i] = False
    def get(self, n=1, align=None):
        if align is None: align = 1 if n == 1 else (2 if self.kind == 'v' or n == 2 else 4)
        for i in range(0, self.hi - n + 1, align):
            if all(self.free[i:i + n]):
                for j in range(i, i + n): self.free[j] = False
                self.maxused = max(self.maxused, i + n)
                return i
        raise Exception('out of %s regs' % self.kind)
    def put(self, i, n=1):
        for j in range(i, i + n):
            assert not self.free[j]
            self.free[j] = True

def vr(i, n=1): return 'v%d' % i if n == 1 else 'v[%d:%d]' % (i, i + n - 1)
def ar(i, n=1): return 'a%d' % i if n == 1 else 'a[%d:%d]' % (i, i + n - 1)
def sr(i, n=1): return 's%d' % i if n == 1 else 's[%d:%d]' % (i, i + n - 1)
```

```python
import sys
from em import *

NAME = 'interleave_layers__sliding_local_dilated__dense_activation_relu__prompt_kernel'

WOT = 0x000000; W2T = 0x080000; W1T = 0x200000
OF = 0x400000; X1F = 0x600000; X2F = 0x800000; HF = 0xA00000
ST0 = 0x1000000; ST1 = 0x1020000; ST2 = 0x1040000
HALO = 0x1080000; FLAGS = 0x1110000; STAMPS = 0x1200000; WS_SIZE = 0x1400000
OOB = 0x80000000
R = 98304
CSQ = R; CS1 = R + 512
SLOT0 = R + 2048
R2 = R + 32768
VIMG = R2; KIMG = R2 + 9216
LDS_BYTES = 163840
SPIN = 1 << 20


class Cfg:
    stamps = False
    stop = None
    force_slow = False


def build(mode, cfg):
    e = Em()
    sfx = '_' + mode
    AUX = '' if mode == 'f' else ' sc0 sc1'
    V = Alloc('v', 1, 256)
    S = Alloc('s', 48, 80)
    lab = lambda p: e.newlabel(p + sfx)
    SX, SWQ, SPP, SWS, SOUT, SDBG = 's[24:27]', 's[28:31]', 's[32:35]', 's[36:39]', 's[40:43]', 's[44:47]'
    stamp_names = []

    pend_st = []
    if cfg.stamps: V.free[255] = False

    def stamp(name):
        if cfg.stamps:
            i = len(pend_st)
            assert i < 11 and len(stamp_names) < 60
            pend_st.append(len(stamp_names))
            stamp_names.append(name)
            e('s_memtime s[%d:%d]' % (80 + 2 * i, 81 + 2 * i))

    def flush_stamps():
        if cfg.stamps and pend_st:
            e('s_waitcnt lgkmcnt(0)')
            for i, j in enumerate(pend_st): e('v_writelane_b32 v255, s%d, %d' % (80 + 2 * i, j))
            pend_st.clear()

    sW, sTeam, sM = 48, 49, 50
    for x in (48, 49, 50): S.free[x] = False
    sFlag = S.get(); sTile = S.get(); sCs = S.get(); sOwn = S.get(); sU0 = S.get()
    sPar = S.get(2); sCur0 = S.get(2); sCur1 = S.get(2)
    t0, t1, t2, t3, t4, t5 = 4, 5, 6, 7, 8, 9
    sB = [10, 11, 12, 13]
    sSpin = 14
    sOffC = [16, 17, 18]
    sPP = [20, 21, 22, 23]
    offc = {'held': [None] * 3, 'n': 0}

    def soff(base, off):
        hi = off & ~4095; lo = off & 4095
        if hi == 0: return base, lo
        key = (base, hi)
        if key in offc['held']: return sOffC[offc['held'].index(key)], lo
        i = offc['n'] % 3; offc['n'] += 1
        offc['held'][i] = key
        e('s_add_u32 s%d, s%d, 0x%x' % (sOffC[i], base, hi))
        return sOffC[i], lo

    def soff_reset(): offc['held'] = [None] * 3

    def imm(o): return ' offset:%d' % o if o else ''

    def ld(dst, vaddr, srd, base, off, tag, aux=' sc1', n=4, kind='v'):
        s, o = soff(base, off)
        d = vr(dst, n) if kind == 'v' else ar(dst, n)
        e('buffer_load_dword%s %s, v%d, %s, s%d offen%s%s' % ('x%d' % n if n > 1 else '', d, vaddr, srd, s, imm(o), aux), tag)

    def st(src, vaddr, srd, base, off, tag, aux, n=4, track=True):
        s, o = soff(base, off)
        e('buffer_store_dword%s %s, v%d, %s, s%d offen%s%s' % ('x%d' % n if n > 1 else '', vr(src, n), vaddr, srd, s, imm(o), aux), tag, track)

    def dma(vaddr, srd, base, off, ldsreg, ldsoff, tag, aux='', track=True):
        s, o = soff(base, off)
        lo = ldsoff - o
        if ldsreg is None:
            assert lo >= 0
            e('s_mov_b32 m0, 0x%x' % lo)
        elif lo >= 0: e('s_add_u32 m0, s%d, 0x%x' % (ldsreg, lo))
        else: e('s_sub_u32 m0, s%d, 0x%x' % (ldsreg, -lo))
        e('buffer_load_dwordx4 v%d, %s, s%d offen%s%s lds' % (vaddr, srd, s, imm(o), aux), tag, track)

    def mfma(d, a, b, c, akind='v'):
        A = vr(a, 4) if akind == 'v' else ar(a, 4)
        e('v_mfma_f32_16x16x32_bf16 %s, %s, %s, %s' % (vr(d, 4), A, vr(b, 4), '0' if c is None else vr(c, 4)))

    def weave(main, fill, start=0, per=1):
        fill = list(fill)
        for i, m in enumerate(main):
            m()
            if i >= start:
                for _ in range(per):
                    if fill: fill.pop(0)()
        for f in fill: f()

    def spin_guard(loop):
        e('s_sub_u32 s%d, s%d, 1' % (sSpin, sSpin))
        e('s_cbranch_scc1 L_end' + sfx)
        e('s_branch ' + loop)

    e('s_cmp_ge_u32 s2, 256')
    e('s_cbranch_scc1 L_exit')
    e('s_load_dwordx16 s[4:19], s[0:1], 0')
    e('s_load_dwordx2 s[20:21], s[0:1], 64')
    stamp('start')
    vL = V.get(); vT = V.get(); vG = V.get(); vL16 = V.get()
    x0 = V.get(); x1 = V.get(); x2 = V.get(); x3 = V.get()
    e('v_lshrrev_b32 v%d, 6, v0' % x0)
    e('v_and_b32 v%d, 63, v0' % vL)
    e('v_readfirstlane_b32 s%d, v%d' % (sW, x0))
    e('v_and_b32 v%d, 15, v0' % vT)
    e('v_lshrrev_b32 v%d, 4, v%d' % (vG, vL))
    e('v_lshlrev_b32 v%d, 4, v%d' % (vL16, vL))
    e('s_and_b32 s%d, s2, 7' % sTeam)
    e('s_lshl_b32 s%d, s%d, 1' % (sTeam, sTeam))
    e('s_lshr_b32 s3, s2, 7')
    e('s_add_u32 s%d, s%d, s3' % (sTeam, sTeam))
    e('s_lshr_b32 s%d, s2, 3' % sM)
    e('s_and_b32 s%d, s%d, 15' % (sM, sM))
    e('s_and_b32 s%d, s%d, 7' % (sCs, sM))
    e('s_lshl_b32 s%d, s%d, 8' % (sFlag, sTeam))
    e('s_add_u32 s%d, s%d, 0x%x' % (sFlag, sFlag, FLAGS))
    e('s_lshl_b32 s%d, s%d, 3' % (sTile, sTeam))
    e('s_lshr_b32 s3, s%d, 3' % sM)
    e('s_lshl_b32 s3, s3, 2')
    e('s_add_u32 s%d, s%d, s3' % (sOwn, sTile))
    e('s_lshl_b32 s3, s%d, 1' % sW)
    e('s_add_u32 s%d, s%d, s3' % (sTile, sTile))
    e('s_mul_i32 s%d, s%d, 3' % (sU0, sM))
    e('s_lshl_b32 s3, s%d, 1' % sM)
    e('s_add_u32 s3, s3, 11')
    e('s_min_u32 s%d, s%d, s3' % (sU0, sU0))
    vWa = [V.get(), V.get()]; vWaH = [V.get(), V.get()]
    vWd = V.get(); vXd = V.get(); vXr = V.get(); vHr = V.get()
    e('v_bfe_u32 v%d, v%d, 2, 2' % (x0, vL))
    e('v_and_b32 v%d, 3, v%d' % (x1, vL))
    e('v_lshl_add_u32 v%d, v%d, 3, v%d' % (x2, vG, x0))
    e('v_lshlrev_b32 v%d, 6, v%d' % (x2, x2))
    e('v_lshl_add_u32 v%d, v%d, 3, v%d' % (x2, x1, x2))
    e('v_and_b32 v%d, 1, v%d' % (x3, vG))
    e('v_lshl_add_u32 v%d, v%d, 5, v%d' % (vWa[0], x3, x2))
    e('v_xor_b32 v%d, 32, v%d' % (vWa[1], vWa[0]))
    e('v_add_u32 v%d, 49152, v%d' % (vWaH[0], vWa[0]))
    e('v_add_u32 v%d, 49152, v%d' % (vWaH[1], vWa[1]))
    e('v_lshrrev_b32 v%d, 4, v%d' % (x2, vL))
    e('v_and_b32 v%d, 2, v%d' % (x2, x2))
    e('v_xor_b32 v%d, v%d, v%d' % (x2, x2, x1))
    e('v_lshrrev_b32 v%d, 2, v%d' % (x3, vL))
    e('v_mul_u32_u24 v%d, 3072, v%d' % (vWd, x3))
    e('v_lshl_add_u32 v%d, v%d, 4, v%d' % (vWd, x2, vWd))

    def swz(dst, src, tmp):
        e('v_lshrrev_b32 v%d, 1, v%d' % (tmp, src))
        e('v_mul_u32_u24 v%d, 3, v%d' % (tmp, tmp))
        e('v_and_b32 v%d, 1, v%d' % (dst, src))
        e('v_lshlrev_b32 v%d, 1, v%d' % (dst, dst))
        e('v_xor_b32 v%d, v%d, v%d' % (dst, dst, tmp))
    swz(x2, vG, vXd)
    e('v_xor_b32 v%d, v%d, v%d' % (x2, x2, x1))
    e('v_lshlrev_b32 v%d, 10, v%d' % (vXd, x3))
    e('v_lshl_add_u32 v%d, v%d, 4, v%d' % (vXd, x2, vXd))
    swz(x2, x0, vHr)
    e('v_xor_b32 v%d, v%d, v%d' % (x2, x2, vG))
    e('v_lshlrev_b32 v%d, 6, v%d' % (vHr, vT))
    e('v_lshl_add_u32 v%d, v%d, 4, v%d' % (vHr, x2, vHr))
    e('s_lshl_b32 s3, s%d, 13' % sW)
    e('s_add_u32 s3, s3, 0x%x' % R)
    e('v_add_u32 v%d, s3, v%d' % (vXr, vHr))
    e('v_add_u32 v%d, 0x%x, v%d' % (vHr, R + 4096, vHr))
    sXslot = S.get()
    e('s_mov_b32 s%d, s3' % sXslot)

    e('s_waitcnt lgkmcnt(0)')
    for srd, p, size in ((24, 4, 2048 * 1024), (28, 6, 512 * 3072), (36, 20, WS_SIZE), (40, 16, 2048 * 1024), (44, 18, 256)):
        e('s_mov_b32 s%d, s%d\ns_mov_b32 s%d, s%d\ns_mov_b32 s%d, 0x%x\ns_mov_b32 s%d, 0x20000' % (srd, p, srd + 1, p + 1, srd + 2, size, srd + 3))
    e('s_lshl_b32 s3, s%d, 8' % sW)
    e('s_add_u32 s3, s3, s2')
    e('s_mov_b32 s35, 0x20000')
    Lw2, Lw1, Lpp = lab('Lw2'), lab('Lw1'), lab('Lpp')
    e('s_cmp_ge_u32 s3, 128')
    e('s_cbranch_scc1 ' + Lw2)
    e('s_mov_b32 s32, s8\ns_mov_b32 s33, s9\ns_mov_b32 s34, 0x%x' % (512 * 1024))
    e('s_and_b32 s4, s3, 7\ns_lshr_b32 s5, s3, 3')
    e('s_lshl_b32 s20, s5, 15\ns_lshl_b32 s6, s4, 7\ns_add_u32 s20, s20, s6')
    e('s_lshl_b32 s21, s4, 4\ns_add_u32 s21, s21, s5\ns_lshl_b32 s21, s21, 12')
    e('s_mov_b32 s22, 1024\ns_mov_b32 s23, 0')
    e('s_branch ' + Lpp)
    e.label(Lw2)
    e('s_cmp_ge_u32 s3, 472')
    e('s_cbranch_scc1 ' + Lw1)
    e('s_mov_b32 s32, s14\ns_mov_b32 s33, s15\ns_mov_b32 s34, 0x%x' % (1376 * 1024))
    e('s_sub_u32 s3, s3, 128')
    e('s_and_b32 s4, s3, 7\ns_lshr_b32 s5, s3, 3')
    e('s_lshl_b32 s20, s5, 15\ns_lshl_b32 s6, s4, 7\ns_add_u32 s20, s20, s6')
    e('s_mul_i32 s21, s4, 43\ns_add_u32 s21, s21, s5\ns_lshl_b32 s21, s21, 12\ns_add_u32 s21, s21, 0x%x' % W2T)
    e('s_mov_b32 s22, 1024\ns_mov_b32 s23, 0')
    e('s_branch ' + Lpp)
    e.label(Lw1)
    e('s_mov_b32 s32, s12\ns_mov_b32 s33, s13\ns_mov_b32 s34, 0x%x' % (512 * 2752))
    e('s_cmp_ge_u32 s3, 824')
    e('s_cselect_b32 s23, 2, 1')
    e('s_sub_u32 s3, s3, 472')
    e('s_and_b32 s5, s3, 15\ns_lshr_b32 s4, s3, 4')
    e('s_mul_i32 s20, s5, %d\ns_lshl_b32 s6, s4, 7\ns_add_u32 s20, s20, s6' % (32 * 2752))
    e('s_lshl_b32 s21, s4, 5\ns_add_u32 s21, s21, s5\ns_lshl_b32 s21, s21, 11\ns_add_u32 s21, s21, 0x%x' % W1T)
    e('s_mov_b32 s22, 2752')
    e.label(Lpp)
    e('s_mov_b32 s%d, 0x%x' % (sSpin, SPIN))

    e('v_mov_b32 v%d, 0' % x0)
    e('s_lshl_b32 s4, s%d, 2\ns_add_u32 s4, s4, s%d' % (sM, sFlag))
    e('s_add_u32 s5, s4, %d' % (256 + 128 - 32))
    e('s_cmp_eq_u32 s%d, 0\ns_cselect_b32 s4, s4, 0x%x' % (sW, OOB))
    e('s_cmp_ge_u32 s%d, 8\ns_cselect_b32 s5, s5, 0x%x' % (sM, OOB))
    e('s_cmp_eq_u32 s%d, 3\ns_cselect_b32 s4, s5, s4' % sW)
    e('s_mov_b64 exec, 1')
    e('buffer_store_dword v%d, off, %s, s4 sc0 sc1' % (x0, SWS), 'z')
    e('s_mov_b64 exec, -1')
    vRow = V.get(8)
    e('s_lshl_b32 s4, s%d, 7\ns_lshl_b32 s5, s%d, 3\ns_add_u32 s4, s4, s5\ns_lshl_b32 s5, s%d, 1\ns_add_u32 s4, s4, s5' % (sTeam, sM, sW))
    e('s_mov_b32 s%d, s4' % sB[3])
    e('s_lshl_b32 s4, s4, 10')
    ld(vRow, vL16, SX, 4, 0, 'row', aux='')
    ld(vRow + 4, vL16, SX, 4, 1024, 'row', aux='')
    e('s_getpc_b64 s[6:7]')
    e('s_lshr_b32 s5, s2, 3\ns_lshl_b32 s5, s5, 11')
    e('s_lshl_b32 s8, s%d, 9\ns_add_u32 s5, s5, s8' % sW)
    e('v_and_b32 v%d, 3, v%d' % (x0, vL))
    e('v_lshl_add_u32 v%d, v%d, 7, s5' % (x0, x0))
    e('v_min_u32 v%d, CODE_BYTES, v%d' % (x0, x0))
    e('global_load_dword v%d, v%d, s[6:7]' % (x1, x0), 'code')
    vPd = V.get()
    Lnp = lab('Lnp')
    e('v_lshrrev_b32 v%d, 3, v%d' % (x2, vL))
    e('v_and_b32 v%d, 7, v%d' % (x3, vL))
    e('v_mul_lo_u32 v%d, s22, v%d' % (vPd, x2))
    e('v_lshl_add_u32 v%d, v%d, 4, v%d' % (vPd, x3, vPd))
    e('s_cmp_eq_u32 s23, 2')
    e('s_cbranch_scc1 ' + Lnp)
    e('s_lshl_b32 s4, s22, 3')
    for i in range(4):
        e('s_add_u32 m0, s%d, 0x%x' % (sXslot, 32768 + i * 1024))
        e('buffer_load_dwordx4 v%d, %s, s20 offen lds' % (vPd, SPP), None, False)
        if i < 3: e('s_add_u32 s20, s20, s4')
    e.label(Lnp)
    e('v_lshlrev_b32 v%d, 10, v%d' % (vPd, x2))
    e('v_lshl_add_u32 v%d, v%d, 4, v%d' % (vPd, x3, vPd))
    e('s_add_u32 s4, s%d, s%d\ns_lshl_b32 s4, s4, 14\ns_lshl_b32 s5, s%d, 7\ns_add_u32 s4, s4, s5' % (sOwn, sW, sCs))
    dma(vPd, SX, 4, 0, sXslot, 32768 + 4096, 'res')
    dma(vPd, SX, 4, 8192, sXslot, 32768 + 5120, 'res')
    V.put(vPd)
    soff_reset()

    e('s_mul_i32 s%d, s%d, %d\ns_lshl_b32 s4, s%d, 6\ns_add_u32 s%d, s%d, s4' % (sB[0], sW, 32 * 3072, sM, sB[0], sB[0]))
    e('s_mul_i32 s%d, s%d, 6144' % (sB[1], sW))
    e('s_lshl_b32 s%d, s%d, 14' % (sB[2], sTile))

    def w_dma(G):
        out = []
        for sec in range(3):
            for half in range(2):
                def f(sec=sec, half=half):
                    goff = (128 * G + 16 * half) * 3072 + sec * 1024
                    e('s_add_u32 s%d, s%d, 0x%x' % (t5, sB[0], goff))
                    dma(vWd, SWQ, t5, 0, sB[1], G * 24576 + sec * 2048 + half * 1024, ('W', G))
                out.append(f)
        return out

    def x_dma(G):
        out = []
        for a in range(2):
            for j in range(4):
                def f(a=a, j=j):
                    dma(vXd, SX, sB[2], a * 16384 + G * 256 + j * 64, sXslot, (G & 1) * 32768 + (a * 4 + j) * 1024, ('X', G))
                out.append(f)
        return out

    for f in w_dma(0) + x_dma(0) + w_dma(1): f()
    stamp('issued')

    vMA = V.get(4)
    vOnes = V.get(4)
    vBias = V.get(4)
    vPoll = V.get(); vStA = V.get(); vVw = V.get(); vL8 = V.get(); vHw = V.get(); vWh = V.get(); vWhH = V.get()
    vCsA = V.get(); vRedW = V.get(3); vRedR = V.get()
    e('v_and_b32 v%d, 1, v%d' % (x0, vT))
    e('v_cmp_eq_u32 s[%d:%d], 1, v%d' % (sPar, sPar + 1, x0))
    e('v_lshl_add_u32 v%d, v%d, 2, v%d' % (x2, vG, x0))
    e('v_cmp_le_u32 s[%d:%d], v%d, v%d' % (sCur0, sCur0 + 1, x2, vT))
    e('v_add_u32 v%d, 2, v%d' % (x2, x2))
    e('v_cmp_le_u32 s[%d:%d], v%d, v%d' % (sCur1, sCur1 + 1, x2, vT))
    e('v_lshlrev_b32 v%d, 4, v%d' % (x0, x0))
    e('v_mov_b32 v%d, 0xffff' % x2)
    e('v_lshlrev_b32 v%d, v%d, v%d' % (x2, x0, x2))
    e('v_cndmask_b32 v%d, v%d, 0, s[%d:%d]' % (vMA + 0, x2, sCur0, sCur0 + 1))
    e('v_cndmask_b32 v%d, v%d, 0, s[%d:%d]' % (vMA + 1, x2, sCur1, sCur1 + 1))
    e('v_cndmask_b32 v%d, 0, v%d, s[%d:%d]' % (vMA + 2, x2, sCur0, sCur0 + 1))
    e('v_cndmask_b32 v%d, 0, v%d, s[%d:%d]' % (vMA + 3, x2, sCur1, sCur1 + 1))
    e('s_cmp_eq_u32 s%d, 0\ns_cselect_b32 s4, 0xf149f2ca, 0' % sTile)
    for i in range(4):
        e('v_mov_b32 v%d, 0x3f803f80' % (vOnes + i))
        e('v_mov_b32 v%d, s4' % (vBias + i))
    e('v_lshlrev_b32 v%d, 2, v%d' % (vPoll, vT))
    e('s_lshr_b32 s4, s%d, 1\ns_lshl_b32 s4, s4, 8\ns_and_b32 s5, s%d, 1\ns_lshl_b32 s5, s5, 3\ns_add_u32 s4, s4, s5' % (sCs, sCs))
    e('v_lshrrev_b32 v%d, 1, v%d' % (x0, vG))
    e('v_lshl_add_u32 v%d, v%d, 2, s4' % (x0, x0))
    e('v_lshl_add_u32 v%d, v%d, 4, v%d' % (vStA, vT, x0))
    e('v_lshlrev_b32 v%d, 3, v%d' % (vL8, vL))
    e('v_lshlrev_b32 v%d, 3, v%d' % (x0, vG))
    e('v_lshl_add_u32 v%d, v%d, 5, v%d' % (x0, vT, x0))
    e('s_lshl_b32 s4, s%d, 11\ns_add_u32 s4, s4, 0x%x' % (sW, VIMG + 1024))
    e('v_add_u32 v%d, s4, v%d' % (vVw, x0))
    e('s_and_b32 s4, s%d, 1\ns_lshl_b32 s4, s4, 9' % sW)
    e('s_add_u32 s5, s4, 0x%x\ns_add_u32 s4, s4, 0x%x' % (KIMG, VIMG))
    e('v_add_u32 v%d, s4, v%d' % (x0, x0))
    e('v_add_u32 v%d, s5, v%d' % (x2, vL8))
    e('s_cmp_lt_u32 s%d, 2\ns_cselect_b64 vcc, -1, 0' % sW)
    e('v_cndmask_b32 v%d, v%d, v%d, vcc' % (vHw, x0, x2))
    e('s_and_b32 s4, s%d, 1\ns_lshl_b32 s4, s4, 5' % sW)
    e('v_xor_b32 v%d, s4, v%d' % (vWh, vWa[0]))
    vWq = V.get()
    e('s_lshr_b32 s4, s%d, 1\ns_mul_i32 s5, s4, 49152' % sW)
    e('v_add_u32 v%d, s5, v%d' % (vWq, vWh))
    e('s_lshl_b32 s4, s4, 11\ns_add_u32 s4, s4, 2048')
    e('v_add_u32 v%d, s4, v%d' % (vWh, vWh))
    e('v_add_u32 v%d, 49152, v%d' % (vWhH, vWh))
    e('v_lshlrev_b32 v%d, 4, v%d' % (vCsA, vG))
    e('v_add_u32 v%d, 0x%x, v%d' % (vCsA, R, vCsA))
    for a in (1, 2, 3):
        e('s_xor_b32 s4, s%d, %d\ns_lshl_b32 s4, s4, 12\ns_add_u32 s4, s4, 0x%x' % (sW, a, R2))
        e('v_add_u32 v%d, s4, v%d' % (vRedW + a - 1, vL16))
    e('s_lshl_b32 s4, s%d, 12\ns_add_u32 s4, s4, 0x%x' % (sW, R2))
    e('v_add_u32 v%d, s4, v%d' % (vRedR, vL16))

    e.wait(vm='row')
    tmp = V.get(12)
    for i in range(2):
        for j in range(4):
            e('v_lshlrev_b32 v%d, 16, v%d' % (tmp + 2 * j, vRow + 4 * i + j))
            e('v_and_b32 v%d, 0xffff0000, v%d' % (tmp + 2 * j + 1, vRow + 4 * i + j))
        sq = tmp + 8 + 2 * i
        e('v_add_f32 v%d, v%d, v%d' % (sq, tmp, tmp + 1))
        e('v_mul_f32 v%d, v%d, v%d' % (sq + 1, tmp, tmp))
        e('v_fmac_f32 v%d, v%d, v%d' % (sq + 1, tmp + 1, tmp + 1))
        for j in range(2, 8):
            e('v_add_f32 v%d, v%d, v%d' % (sq, sq, tmp + j))
            e('v_fmac_f32 v%d, v%d, v%d' % (sq + 1, tmp + j, tmp + j))
    for dpp in ('quad_perm:[1,0,3,2]', 'quad_perm:[2,3,0,1]', 'row_half_mirror'):
        for j in range(4):
            e('v_add_f32_dpp v%d, v%d, v%d %s row_mask:0xf bank_mask:0xf' % (tmp + 8 + j, tmp + 8 + j, tmp + 8 + j, dpp))
    e('v_lshlrev_b32 v%d, 8, v%d' % (x0, vG))
    e('v_and_b32 v%d, 8, v%d' % (x2, vL))
    e('v_add_u32 v%d, v%d, v%d' % (x0, x0, x2))
    e('s_lshr_b32 s4, s%d, 4\ns_lshl_b32 s4, s4, 10\ns_and_b32 s5, s%d, 15\ns_lshl_b32 s5, s5, 4\ns_add_u32 s4, s4, s5\ns_add_u32 s4, s4, 0x%x' % (sB[3], sB[3], ST0))
    e('s_mov_b32 exec_lo, 0x01010101\ns_mov_b32 exec_hi, 0x01010101')
    st(tmp + 8, x0, SWS, 4, 0, 'z', ' sc0 sc1', n=2)
    st(tmp + 10, x0, SWS, 4, 16, 'z', ' sc0 sc1', n=2)
    e('s_mov_b64 exec, -1')
    V.put(vRow, 8); V.put(tmp, 12)

    e.wait(vm='res')
    vRes = V.get(16)
    tmp = V.get(16)
    e('v_lshlrev_b32 v%d, 7, v%d' % (x0, vT))
    e('v_lshl_add_u32 v%d, v%d, 4, v%d' % (x0, vG, x0))
    e('v_add_u32 v%d, s%d, v%d' % (x0, sXslot, x0))
    e('ds_read_b128 %s, v%d offset:%d' % (vr(tmp, 4), x0, 32768 + 4096))
    e('ds_read_b128 %s, v%d offset:%d' % (vr(tmp + 4, 4), x0, 32768 + 4096 + 64))
    e.wait(lg='all')
    for j in range(8):
        e('v_lshlrev_b32 v%d, 16, v%d' % (vRes + 2 * j, tmp + j))
        e('v_and_b32 v%d, 0xffff0000, v%d' % (vRes + 2 * j + 1, tmp + j))
    LB, Lst, Lno = lab('LB'), lab('Lst'), lab('Lno')
    e('v_bfe_u32 v%d, v%d, 2, 2' % (x2, vL))
    e('v_and_b32 v%d, 3, v%d' % (x3, vL))
    e('s_cmp_eq_u32 s23, 2')
    e('s_cbranch_scc1 ' + Lno)
    e('s_cmp_eq_u32 s23, 1')
    e('s_cbranch_scc1 ' + LB)
    e('v_lshl_add_u32 v%d, v%d, 2, v%d' % (x0, vG, x2))
    e('v_lshlrev_b32 v%d, 7, v%d' % (x0, x0))
    e('v_lshl_add_u32 v%d, v%d, 4, v%d' % (x0, x3, x0))
    e('v_add_u32 v%d, s%d, v%d' % (x0, sXslot, x0))
    for u in range(2):
        for b in range(2):
            for hh in range(2):
                e('ds_read_b64_tr_b16 %s, v%d offset:%d' % (vr(tmp + 8 * u + 4 * b + 2 * hh, 2), x0, 32768 + hh * 2048 + 64 * u + 8 * b), None, False)
    e('s_mov_b32 s5, 2048')
    e('s_branch ' + Lst)
    e.label(LB)
    e('v_lshl_add_u32 v%d, v%d, 3, v%d' % (x0, vG, x2))
    e('v_lshlrev_b32 v%d, 7, v%d' % (x0, x0))
    e('v_lshl_add_u32 v%d, v%d, 3, v%d' % (x0, x3, x0))
    e('v_add_u32 v%d, s%d, v%d' % (x0, sXslot, x0))
    for u in range(2):
        for b in range(2):
            for hh in range(2):
                e('ds_read_b64_tr_b16 %s, v%d offset:%d' % (vr(tmp + 8 * u + 4 * b + 2 * hh, 2), x0, 32768 + hh * 512 + 64 * u + 32 * b), None, False)
    e('s_mov_b32 s5, 32768')
    e.label(Lst)
    e('s_add_u32 s5, s5, s21')
    e('s_waitcnt lgkmcnt(0)')
    st(tmp, vL16, SWS, 21, 0, None, ' sc0 sc1', track=False)
    st(tmp + 4, vL16, SWS, 21, 1024, None, ' sc0 sc1', track=False)
    st(tmp + 8, vL16, SWS, 5, 0, None, ' sc0 sc1', track=False)
    st(tmp + 12, vL16, SWS, 5, 1024, None, ' sc0 sc1', track=False)
    e.label(Lno)
    V.put(tmp, 16)
    for f in x_dma(1) + w_dma(2): f()
    stamp('prepass')

    def stats_items(src, dst):
        it = []
        A = it.append
        A(lambda: e('v_pk_add_f32 %s, %s, %s' % (vr(src, 2), vr(src, 2), vr(src + 2, 2))))
        A(lambda: e('v_permlane32_swap_b32 v%d, v%d' % (src, src + 1)))
        A(lambda: e('v_add_f32 v%d, v%d, v%d' % (src, src, src + 1)))
        A(lambda: e('v_mov_b32 v%d, v%d' % (src + 1, src)))
        A(lambda: e('v_permlane16_swap_b32 v%d, v%d' % (src, src + 1)))
        A(lambda: e('v_add_f32 v%d, v%d, v%d' % (src, src, src + 1)))
        A(lambda: e('v_mov_b32 v%d, v%d' % (src + 1, src)))
        A(lambda: e('v_permlane32_swap_b32 v%d, v%d' % (src, src + 1)))
        A(lambda: e('v_mul_f32 v%d, 0xbb000000, v%d' % (dst, src)))
        A(lambda: e('v_mul_f32 v%d, 0x3b000000, v%d' % (src + 1, src + 1)))
        A(lambda: e('v_fma_f32 v%d, -v%d, v%d, v%d' % (src + 1, dst, dst, src + 1)))
        A(lambda: e('v_max_f32 v%d, 0, v%d' % (src + 1, src + 1)))
        A(lambda: e('v_add_f32 v%d, 0x3727c5ac, v%d' % (src + 1, src + 1)))
        A(lambda: e('v_rsq_f32 v%d, v%d' % (dst + 1, src + 1)))
        return it

    def zipitems(*lists):
        out = []
        for i in range(max(len(l) for l in lists)):
            for l in lists:
                if i < len(l): out.append(l[i])
        return out

    def ln_tile(acc, cs, mr, out, scale=True, relu=False):
        it = []
        for h in range(2):
            it.append(lambda h=h: e('v_pk_fma_f32 %s, %s, %s, %s op_sel:[0,0,0] op_sel_hi:[1,0,1]' % (vr(acc + 2 * h, 2), vr(cs + 2 * h, 2), vr(mr, 2), vr(acc + 2 * h, 2))))
        if scale:
            for h in range(2):
                it.append(lambda h=h: e('v_pk_mul_f32 %s, %s, %s op_sel:[0,1] op_sel_hi:[1,1]' % (vr(acc + 2 * h, 2), vr(acc + 2 * h, 2), vr(mr, 2))))
        for h in range(2):
            it.append(lambda h=h: e('v_cvt_pk_bf16_f32 v%d, v%d, v%d' % (out + h, acc + 2 * h, acc + 2 * h + 1)))
        if relu:
            for h in range(2):
                it.append(lambda h=h: e('v_pk_max_i16 v%d, v%d, 0' % (out + h, out + h)))
        return it

    def team_sync(p, tag, after_flag=None):
        flush_stamps()
        e.wait(vm=tag)
        stamp('acked')
        e('s_barrier')
        Ln, Lp, Lq = lab('Ln'), lab('Lp'), lab('Lq')
        e('s_cmp_lg_u32 s%d, 0' % sW)
        e('s_cbranch_scc1 ' + Ln)
        e('v_mov_b32 v%d, %d' % (x0, p))
        e('s_lshl_b32 s4, s%d, 2\ns_add_u32 s4, s4, s%d' % (sM, sFlag))
        e('s_mov_b64 exec, 1')
        e('buffer_store_dword v%d, off, %s, s4%s' % (x0, SWS, AUX), None, False)
        e('s_mov_b64 exec, -1')
        e.label(Lp)
        e('buffer_load_dword v%d, v%d, %s, s%d offen sc1' % (x0, vPoll, SWS, sFlag), None, False)
        e('s_waitcnt vmcnt(0)')
        e('v_cmp_gt_u32 vcc, %d, v%d' % (p, x0))
        e('s_cbranch_vccz ' + Ln)
        spin_guard(Lp)
        e.label(Ln)
        e('s_barrier')
        stamp('synced')

    def w1_dma(ks, first, tag):
        out = []
        base = (SLOT0 + (ks % 10) * 6144) if first else ks * 6144
        for j in range(3):
            for b in range(2):
                out.append((j * 32768 + ks * 2048 + b * 1024, base + j * 2048 + b * 1024))
        return out

    def w1_issue(kss, first, tag):
        items = []
        assert len(kss) % 2 == 0
        for i in range(0, len(kss), 2):
            ks = kss[i]
            assert kss[i + 1] == ks + 1 and (not first or ks % 10 != 9)
            base = (SLOT0 + (ks % 10) * 6144) if first else ks * 6144
            for j in range(3):
                items.append(lambda ks=ks, j=j, base=base: dma(vL16, SWS, sW1g, j * 32768 + ks * 2048, sW1l, base + j * 2048, tag, aux=' sc1'))
        return items

    sW1g = S.get(); sW1l = S.get()

    def P1(first):
        acc = V.get(48); hacc = V.get(4)
        WF = V.get(48); XR = V.get(64)
        stt = V.get(12); mr = V.get(6)
        cacc = V.get(8) if first else None
        A = lambda a, c: acc + (a * 6 + c) * 4
        wf = lambda ks, c: WF + ((ks & 1) * 6 + c) * 4
        xr = lambda ks, a: XR + ((ks % 8) * 2 + a) * 4
        soff_reset()

        def wreads(ks):
            out = []
            for c in range(6):
                for h in range(2):
                    def f(c=c, h=h):
                        base = vWa if ks < 8 else vWaH
                        e('ds_read_b64_tr_b16 %s, v%d offset:%d' % (vr(wf(ks, c) + 2 * h, 2), base[c & 1], (ks & 7) * 6144 + (c >> 1) * 2048 + h * 256), ('w', ks, c))
                    out.append(f)
            return out

        def xreads(G):
            out = []
            for j in range(4):
                for a in range(2):
                    out.append(lambda a=a, j=j: e('ds_read_b128 %s, v%d offset:%d' % (vr(xr(4 * G + j, a), 4), vXr, (G & 1) * 32768 + (a * 4 + j) * 1024), ('x', G)))
            return out

        def xload(ks):
            return [lambda a=a: ld(xr(ks, a), vL16, SWS, sB[2], a * 16384 + ks * 1024, ('X', ks)) for a in range(2)]

        def halo_dma():
            out = []
            for j in range(4):
                if first: out.append(lambda j=j: dma(vXd, SX, sB[3], j * 64, sXslot, 4096 + j * 1024, 'halo'))
                else: out.append(lambda j=j: dma(vL16, SWS, sB[3], j * 1024, sXslot, 4096 + j * 1024, 'halo', aux=' sc1'))
            return out

        LOOK = 5
        if first:
            e('s_lshl_b32 s4, s%d, 17\ns_sub_u32 s4, s4, 16384\ns_lshl_b32 s5, s%d, 8\ns_add_u32 s4, s4, s5' % (sTeam, sW))
            e('s_cmp_eq_u32 s%d, 0\ns_cselect_b32 s%d, 0x%x, s4' % (sTeam, sB[3], OOB))
            e.wait(vm=[('W', 0), ('X', 0)])
            e('s_barrier')
            for f in zipitems(wreads(0), xreads(0)): f()
            e.wait(lg=('x', 0))
            for f in x_dma(2) + w_dma(3): f()
        else:
            e('s_lshl_b32 s%d, s%d, 14\ns_add_u32 s%d, s%d, 0x%x' % (sB[2], sTile, sB[2], sB[2], X2F))
            for ks in range(LOOK):
                for f in xload(ks): f()
            e('s_lshl_b32 s4, s%d, 10\ns_add_u32 s4, s4, 0x%x' % (sTile, ST2))
            ld(stt, vL16, SWS, 4, 0, 'st')
            ld(stt + 4, vL16, SWS, 4, 1024, 'st')
            e('s_lshl_b32 s4, s%d, 15\ns_add_u32 s4, s4, 0x%x' % (sTeam, HALO))
            e('s_add_u32 s%d, s4, 16384' % sB[0])
            e('s_lshl_b32 s5, s%d, 12\ns_add_u32 s4, s4, s5' % sW)
            e('s_cmp_eq_u32 s%d, 0\ns_cselect_b32 s%d, 0x%x, s4\ns_cselect_b32 s%d, 0x%x, s%d' % (sTeam, sB[3], OOB, sB[0], OOB, sB[0]))
            e('v_add_u32 v%d, 0x%x, v%d' % (vHr, R + 4096, vL16))
            for f in wreads(0): f()
        stamp('p1start')

        for ks in range(16):
            pre = []; fill = []
            if first and ks % 4 == 3 and ks < 15:
                G = ks // 4 + 1
                e.wait(vm=[('W', G), ('X', G)])
                e('s_barrier')
                if G == 1:
                    La = lab('La')
                    e('s_cmp_lg_u32 s%d, 0' % sW)
                    e('s_cbranch_scc1 ' + La)
                    e('s_getreg_b32 s4, hwreg(HW_REG_XCC_ID, 0, 4)')
                    e('s_mul_i32 s5, s4, s4\ns_lshl_b32 s5, s5, 16\ns_lshl_b32 s4, s4, 8\ns_add_u32 s4, s4, s5\ns_add_u32 s4, s4, 1')
                    e('v_mov_b32 v%d, s4' % x0)
                    e('s_lshl_b32 s4, s%d, 4' % sTeam)
                    e('s_mov_b64 exec, 1')
                    e('buffer_atomic_add v%d, off, %s, s4 sc1' % (x0, SDBG), None, False)
                    e('s_mov_b64 exec, -1')
                    e.label(La)
                fill = zipitems(wreads(ks + 1), xreads(G))
            elif ks < 15:
                fill = wreads(ks + 1)
            if first and ks == 4:
                e.wait(lg=('x', 1))
                fill = zipitems(fill, x_dma(3))
            if first and ks == 8:
                e.wait(lg=('x', 2))
                fill = zipitems(fill, halo_dma())
            if first and ks == 9:
                e('v_lshlrev_b32 v%d, 4, v%d' % (x2, vT))
                e('buffer_load_dword v%d, v%d, %s, 0 offen sc1' % (x1, x2, SDBG), 'gp')
            if first and ks == 12:
                Lg, Lh = lab('Lg'), lab('Lh')
                e.wait(vm='gp')
                e.label(Lg)
                e('v_and_b32 v%d, 0xff, v%d' % (x0, x1))
                e('v_cmp_ne_u32 vcc, 16, v%d' % x0)
                e('s_cbranch_vccz ' + Lh)
                e('buffer_load_dword v%d, v%d, %s, 0 offen sc1' % (x1, x2, SDBG), None, False)
                e('s_waitcnt vmcnt(0)')
                spin_guard(Lg)
                e.label(Lh)
                e('v_readlane_b32 s6, v%d, s%d' % (x1, sTeam))
                e('s_getreg_b32 s4, hwreg(HW_REG_XCC_ID, 0, 4)')
                e('s_mul_i32 s5, s4, s4\ns_lshl_b32 s5, s5, 16\ns_lshl_b32 s4, s4, 8\ns_add_u32 s4, s4, s5\ns_add_u32 s4, s4, 1\ns_lshl_b32 s4, s4, 4')
                if cfg.force_slow: e('s_mov_b32 s4, 0')
                e('s_cmp_eq_u32 s4, s6')
                e('s_cbranch_scc0 L_fork_s')
                e.label('L_fork' + sfx)
                e('s_lshl_b32 s4, s%d, 10\ns_add_u32 s4, s4, 0x%x' % (sTile, ST0))
                ld(stt, vL16, SWS, 4, 0, 'st')
                ld(stt + 4, vL16, SWS, 4, 1024, 'st')
                e('s_lshl_b32 s4, s%d, 13\ns_add_u32 s4, s4, 0x%x' % (sTeam, ST0 - 1024))
                e('s_cmp_eq_u32 s%d, 0\ns_cselect_b32 s4, 0x%x, s4' % (sTeam, OOB))
                ld(stt + 8, vL16, SWS, 4, 0, 'sth')
                e('s_lshl_b32 s%d, s%d, 16\ns_lshl_b32 s4, s%d, 14\ns_add_u32 s%d, s%d, s4' % (sB[0], sCs, sW, sB[0], sB[0]))
                soff_reset()
            if first and ks >= 12:
                j = ks - 12
                fill = zipitems(fill, [lambda c=c: ld(16 * j + 4 * c, vL16, SWS, sB[0], WOT + j * 4096 + c * 1024, 'wo', kind='a') for c in range(4)])
            if not first:
                if ks + LOOK < 16: fill = zipitems(fill, xload(ks + LOOK))
                if ks == 5:
                    e('s_add_u32 s4, s%d, 128' % sFlag)
                    e('v_and_b32 v%d, 28, v%d' % (x2, vPoll))
                    e('buffer_load_dword v%d, v%d, %s, s4 offen sc1' % (x1, x2, SWS), 'hp')
                if ks == 4:
                    e.wait(vm='st')
                    fill = zipitems(fill, stats_items(stt, mr))
                if ks == 6:
                    fill = zipitems(fill, stats_items(stt + 4, mr + 2))
                if ks == 9:
                    Lg, Lh = lab('Lg'), lab('Lh')
                    e.wait(vm='hp')
                    e('s_cmp_eq_u32 s%d, 0' % sTeam)
                    e('s_cbranch_scc1 ' + Lh)
                    e.label(Lg)
                    e('v_cmp_ne_u32 vcc, 1, v%d' % x1)
                    e('s_cbranch_vccz ' + Lh)
                    e('s_add_u32 s4, s%d, 128' % sFlag)
                    e('buffer_load_dword v%d, v%d, %s, s4 offen sc1' % (x1, x2, SWS), None, False)
                    e('s_waitcnt vmcnt(0)')
                    spin_guard(Lg)
                    e.label(Lh)
                    fill = zipitems(fill, halo_dma() + [lambda: ld(stt + 8, vL16, SWS, sB[0], 0, 'sth')])
                e.wait(vm=('X', ks))
            elif ks % 4 == 0:
                e.wait(lg=('x', ks // 4))
            main = []
            for c in range(6):
                for a in range(2):
                    def f(c=c, a=a):
                        if a == 0 and c in (0, 3): e.wait(lg=('w', ks, c + 2))
                        mfma(A(a, c), wf(ks, c), xr(ks, a), None if ks == 0 else A(a, c))
                    main.append(f)
            weave(main, fill, 0, 2 if len(fill) > 12 else 1)
        stamp('p1gemm')

        e.wait(vm=['halo', 'sth'])
        e('s_barrier')
        D = 4
        hw = lambda ks: WF + (ks % D) * 4
        hx = lambda ks: WF + 16 + (ks % D) * 4
        hq = lambda ks: WF + 32 + (ks % D) * 4

        def hreads(ks):
            base = vWh if ks < 8 else vWhH
            for h in range(2):
                e('ds_read_b64_tr_b16 %s, v%d offset:%d' % (vr(hw(ks) + 2 * h, 2), base, (ks & 7) * 6144 + h * 256), ('h', ks))
            e('ds_read_b128 %s, v%d offset:%d' % (vr(hx(ks), 4), vHr, (ks >> 2) * 8192 + (ks & 3) * 1024), ('h', ks))
            if first and ks < 8:
                for h in range(2):
                    e('ds_read_b64_tr_b16 %s, v%d offset:%d' % (vr(hq(ks) + 2 * h, 2), vWq, ks * 6144 + h * 256), ('h', ks))
        sti = stats_items(stt + 8, mr + 4)
        if first: sti = zipitems(stats_items(stt, mr), stats_items(stt + 4, mr + 2), sti)
        for ks in range(D - 1): hreads(ks)
        for ks in range(16):
            e.wait(lg=('h', ks))
            mfma(hacc, hw(ks), hx(ks), None if ks == 0 else hacc)
            if first:
                mfma(cacc, hw(ks), vOnes, None if ks == 0 else cacc)
                if ks < 8: mfma(cacc + 4, hq(ks), vOnes, None if ks == 0 else cacc + 4)
            if ks + D - 1 < 16: hreads(ks + D - 1)
            for _ in range(3 if first else 1):
                if sti: sti.pop(0)()
        for f in sti: f()
        if first:
            e('s_lshl_b32 s4, s%d, 6' % sW)
            e('v_add_u32 v%d, s4, v%d' % (x0, vCsA))
            e('s_lshr_b32 s4, s%d, 1\ns_mul_i32 s4, s4, 6\ns_and_b32 s5, s%d, 1\ns_add_u32 s4, s4, s5\ns_lshl_b32 s4, s4, 6' % (sW, sW))
            e('v_add_u32 v%d, s4, v%d' % (x2, vCsA))
            e('s_mov_b32 exec_lo, 0x00010001\ns_mov_b32 exec_hi, 0x00010001')
            e('ds_write_b128 v%d, %s offset:128' % (x0, vr(cacc, 4)))
            e('ds_write_b128 v%d, %s' % (x2, vr(cacc + 4, 4)))
            e('s_mov_b64 exec, -1')
            e.wait(lg='all')
        e('s_barrier')
        e('s_lshl_b32 s%d, s%d, 15\ns_lshl_b32 s4, s%d, 10\ns_add_u32 s%d, s%d, s4\ns_add_u32 s%d, s%d, 0x%x' % (sW1g, sU0, sW, sW1g, sW1g, sW1g, sW1g, W1T))
        e('s_lshr_b32 s4, s%d, 1\ns_mul_i32 s4, s4, 6144\ns_and_b32 s5, s%d, 1\ns_lshl_b32 s5, s5, 10\ns_add_u32 s%d, s4, s5' % (sW, sW, sW1l))
        soff_reset()
        cs = WF
        hcs = WF + 32
        for j in (2, 3, 4, 5, 0, 1, 6, 7):
            e('ds_read_b128 %s, v%d offset:%d' % (vr(cs + 4 * j, 4), vCsA, j * 64), ('cs', j))
        e('s_lshl_b32 s4, s%d, 6' % sW)
        e('v_add_u32 v%d, s4, v%d' % (x0, vCsA))
        e('ds_read_b128 %s, v%d offset:128' % (vr(hcs, 4), x0), 'hcs')
        dm = w1_issue(list(range(4 if first else 16)), first, 'w1a')
        kq = XR
        qq = XR + 8
        vv = XR + 16
        hh_ = XR + 24
        kp = XR + 26
        vt = XR + 30
        e.wait(lg=('cs', 5))
        it = []
        for a in range(2):
            for b in range(2):
                it += ln_tile(A(a, 4 + b), cs + 4 * (4 + b), mr + 2 * a, vv + 4 * a + 2 * b)
                it.append(lambda a=a, b=b: e('ds_write_b64 v%d, %s offset:%d' % (vVw, vr(vv + 4 * a + 2 * b, 2), a * 1024 + b * 512)))
        e('s_lshl_b32 s4, s%d, 10\ns_add_u32 s4, s4, 0x%x' % (sW, KIMG))
        e('v_add_u32 v%d, s4, v%d' % (x3, vL8))
        for b in range(2):
            it += ln_tile(A(1, 2 + b), cs + 4 * (2 + b), mr + 2, kq + 4 + 2 * b)
            it.append(lambda b=b: e('ds_write_b64 v%d, %s offset:%d' % (x3, vr(kq + 4 + 2 * b, 2), 1024 + b * 512)))
        it.append(lambda: e.wait(lg='hcs'))
        it += ln_tile(hacc, hcs, mr + 4, hh_)
        it.append(lambda: e('ds_write_b64 v%d, %s' % (vHw, vr(hh_, 2))))
        weave(it, dm, 0, 1)
        for b in range(2):
            for f in ln_tile(A(0, 2 + b), cs + 4 * (2 + b), mr, kq + 2 * b): f()
        e.wait(lg='all')
        e('s_barrier')
        e('s_lshl_b32 s4, s%d, 11\ns_add_u32 s4, s4, 0x%x' % (sW, VIMG))
        e('v_add_u32 v%d, s4, v%d' % (x2, vL8))
        for b in range(2):
            e('ds_read_b64 %s, v%d offset:%d' % (vr(kp + 2 * b, 2), x3, b * 512), 'kp')
        for b in range(2):
            for i in range(3):
                e('ds_read_b64_tr_b16 %s, v%d offset:%d' % (vr(vt + 6 * b + 2 * i, 2), x2, i * 1024 + b * 512), 'vt')
        for b in range(2):
            for h in range(2):
                e('v_pk_add_f32 %s, %s, %s' % (vr(cs + 4 * b + 2 * h, 2), vr(cs + 4 * b + 2 * h, 2), vr(cs + 24 + 4 * b + 2 * h, 2)))
        for a in range(2):
            for b in range(2):
                for f in ln_tile(A(a, b), cs + 4 * b, mr + 2 * a, qq + 4 * a + 2 * b, scale=False): f()
        for a in range(2):
            e('v_mul_f32 v%d, 0x3eb8aa3b, v%d' % (mr + 2 * a + 1, mr + 2 * a + 1))
        e.wait(lg='kp')
        prs = [(a, b) for a in range(2) for b in range(2)]
        Sp = lambda i: acc + 8 * i
        Sc = lambda i: acc + 8 * i + 4
        for i, (a, b) in enumerate(prs):
            kprev = kp + 2 * b if a == 0 else kq + 2 * b
            e('v_mfma_f32_16x16x16_bf16 %s, %s, %s, %s' % (vr(Sp(i), 4), vr(kprev, 2), vr(qq + 4 * a + 2 * b, 2), vr(vBias, 4) if a == 0 else '0'))
            e('v_mfma_f32_16x16x16_bf16 %s, %s, %s, 0' % (vr(Sc(i), 4), vr(kq + 4 * a + 2 * b, 2), vr(qq + 4 * a + 2 * b, 2)))
        T = lambda i: WF + 8 * i
        P = lambda i: acc + 32 + 4 * i
        par = 's[%d:%d]' % (sPar, sPar + 1); c0 = 's[%d:%d]' % (sCur0, sCur0 + 1); c1 = 's[%d:%d]' % (sCur1, sCur1 + 1)
        steps = [
            lambda i, a: e('v_cndmask_b32 v%d, v%d, v%d, %s' % (T(i), Sp(i), Sp(i) + 1, par)),
            lambda i, a: e('v_cndmask_b32 v%d, v%d, v%d, %s' % (T(i) + 1, Sp(i) + 2, Sp(i) + 3, par)),
            lambda i, a: e('v_cndmask_b32 v%d, v%d, v%d, %s' % (T(i) + 2, Sc(i), Sc(i) + 1, par)),
            lambda i, a: e('v_cndmask_b32 v%d, v%d, v%d, %s' % (T(i) + 3, Sc(i) + 2, Sc(i) + 3, par)),
            lambda i, a: e('v_cndmask_b32 v%d, v%d, v%d, %s' % (T(i), T(i), T(i) + 2, c0)),
            lambda i, a: e('v_cndmask_b32 v%d, v%d, v%d, %s' % (T(i) + 1, T(i) + 1, T(i) + 3, c1)),
            lambda i, a: e('v_max_f32 v%d, v%d, v%d' % (T(i) + 2, T(i), T(i) + 1)),
            lambda i, a: e('v_mov_b32 v%d, v%d' % (T(i) + 3, T(i) + 2)),
            lambda i, a: e('v_permlane32_swap_b32 v%d, v%d' % (T(i) + 2, T(i) + 3)),
            lambda i, a: e('v_max_f32 v%d, v%d, v%d' % (T(i) + 2, T(i) + 2, T(i) + 3)),
            lambda i, a: e('v_mov_b32 v%d, v%d' % (T(i) + 3, T(i) + 2)),
            lambda i, a: e('v_permlane16_swap_b32 v%d, v%d' % (T(i) + 2, T(i) + 3)),
            lambda i, a: e('v_max_f32 v%d, v%d, v%d' % (T(i) + 2, T(i) + 2, T(i) + 3)),
            lambda i, a: e('v_sub_f32 v%d, v%d, v%d' % (T(i), T(i), T(i) + 2)),
            lambda i, a: e('v_sub_f32 v%d, v%d, v%d' % (T(i) + 1, T(i) + 1, T(i) + 2)),
            lambda i, a: e('v_pk_mul_f32 %s, %s, %s op_sel:[0,1] op_sel_hi:[1,1]' % (vr(T(i), 2), vr(T(i), 2), vr(mr + 2 * a, 2))),
            lambda i, a: e('v_exp_f32 v%d, v%d' % (T(i), T(i))),
            lambda i, a: e('v_exp_f32 v%d, v%d' % (T(i) + 1, T(i) + 1)),
            lambda i, a: e('v_cvt_pk_bf16_f32 v%d, v%d, v%d' % (T(i), T(i), T(i))),
            lambda i, a: e('v_cvt_pk_bf16_f32 v%d, v%d, v%d' % (T(i) + 1, T(i) + 1, T(i) + 1)),
            lambda i, a: e('v_and_b32 v%d, v%d, v%d' % (P(i), vMA, T(i))),
            lambda i, a: e('v_and_b32 v%d, v%d, v%d' % (P(i) + 1, vMA + 1, T(i) + 1)),
            lambda i, a: e('v_and_b32 v%d, v%d, v%d' % (P(i) + 2, vMA + 2, T(i))),
            lambda i, a: e('v_and_b32 v%d, v%d, v%d' % (P(i) + 3, vMA + 3, T(i) + 1)),
        ]
        for s_ in steps:
            for i, (a, b) in enumerate(prs): s_(i, a)
        e.wait(lg='vt')
        for i, (a, b) in enumerate(prs):
            mfma(Sc(i), vOnes, P(i), None)
            mfma(Sp(i), vt + 6 * b + 2 * a, P(i), None)
        for i in range(4): e('v_rcp_f32 v%d, v%d' % (Sc(i), Sc(i)))
        e('s_lshl_b32 s4, s%d, 14\ns_lshl_b32 s5, s%d, 10\ns_add_u32 s4, s4, s5\ns_add_u32 s4, s4, 0x%x\ns_add_u32 s5, s4, 16384' % (sTile, sM, OF))
        for i, (a, b) in enumerate(prs):
            for h in range(2):
                e('v_pk_mul_f32 %s, %s, %s op_sel:[0,0] op_sel_hi:[1,0]' % (vr(Sp(i) + 2 * h, 2), vr(Sp(i) + 2 * h, 2), vr(Sc(i), 2)))
            for h in range(2):
                e('v_cvt_pk_bf16_f32 v%d, v%d, v%d' % (XR + 2 * i + h, Sp(i) + 2 * h, Sp(i) + 2 * h + 1))
            if b == 1: st(XR + 4 * a, vL16, SWS, 4 + a, 0, 'o', AUX)
        stamp('p1end')
        for r_, n_ in ((acc, 48), (hacc, 4), (WF, 48), (XR, 64), (stt, 12), (mr, 6)): V.put(r_, n_)
        if first: V.put(cacc, 8)

    def PK(nks, abase, src, tstride, dstf, dsts, last, halo, extra=None):
        NR = 16
        XR = V.get(4 * NR); acc = V.get(32); rd = V.get(16); pk = V.get(8); sq = V.get(4)
        soff_reset()
        order = [(a, s) for a in (3, 2, 1, 0) for s in range(nks)]
        e('s_mul_i32 s4, s%d, %d\ns_add_u32 s4, s4, 0x%x' % (sW, nks * 1024, src))
        for a in range(4):
            e('s_xor_b32 s5, s%d, %d\ns_add_u32 s5, s5, s%d\ns_mul_i32 s5, s5, %d\ns_add_u32 s%d, s5, s4' % (sW, a, sOwn, tstride, sB[a]))

        def load(i):
            a, s = order[i]
            if nks == 11 and s == 10:
                e('s_add_u32 s4, s%d, 10240\ns_cmp_eq_u32 s%d, 3\ns_cselect_b32 s4, 0x%x, s4' % (sB[a], sW, OOB))
                ld(XR + 4 * (i % NR), vL16, SWS, 4, 0, ('x', i))
            else:
                ld(XR + 4 * (i % NR), vL16, SWS, sB[a], s * 1024, ('x', i))
        LOOK = 12
        for i in range(min(LOOK, len(order))): load(i)
        ac = lambda a, c: acc + (a & 1) * 16 + 4 * c
        pend = []
        for i, (a, s) in enumerate(order):
            e.wait(vm=('x', i))
            if s == 0 and a < 3:
                p = a + 1
                bo = 16384 if p == 2 else 0
                pend = [None, None]
                pend += [lambda c=c, p=p, bo=bo: e('ds_write_b128 v%d, %s offset:%d' % (vRedW + p - 1, vr(ac(p, c), 4), bo + c * 1024), 'rw') for c in range(4)]
                pend += [None] * (6 if nks > 4 else 2)
                pend += [lambda: (e.wait(lg='all'), e('s_barrier'))]
                pend += [lambda c=c, bo=bo: e('ds_read_b128 %s, v%d offset:%d' % (vr(rd + 4 * c, 4), vRedR, bo + c * 1024), 'rr') for c in range(4)]
                pend += [None] * (4 if nks > 4 else 0)
                pend += [lambda: e.wait(lg='rr')]
                pend += [lambda j=j: e('v_pk_add_f32 %s, %s, %s' % (vr(vRes + 2 * j, 2), vr(vRes + 2 * j, 2), vr(rd + 2 * j, 2))) for j in range(8)]
            for c in range(4):
                mfma(ac(a, c), abase + 16 * s + 4 * c, XR + 4 * (i % NR), None if s == 0 else ac(a, c), 'a')
                if pend:
                    f = pend.pop(0)
                    if f: f()
            if i + LOOK < len(order): load(i + LOOK)
            if s == nks - 1:
                for f in pend:
                    if f: f()
                pend = []
        stamp('gemm')
        if extra: extra()
        if last:
            e('s_add_u32 s4, s%d, s%d\ns_lshl_b32 s4, s4, 14\ns_lshl_b32 s5, s%d, 7\ns_add_u32 s4, s4, s5' % (sOwn, sW, sCs))
            e('v_lshlrev_b32 v%d, 10, v%d' % (x0, vT))
            e('v_lshl_add_u32 v%d, v%d, 4, v%d' % (x0, vG, x0))
        else:
            e('s_add_u32 s6, s%d, s%d\ns_lshl_b32 s4, s6, 14\ns_lshl_b32 s5, s%d, 11\ns_add_u32 s4, s4, s5\ns_add_u32 s4, s4, 0x%x' % (sOwn, sW, sCs, dstf))
            e('s_lshl_b32 s6, s6, 10\ns_add_u32 s6, s6, 0x%x' % dsts)
        for u in range(2):
            for j in range(4 * u, 4 * u + 4):
                e('v_pk_add_f32 %s, %s, %s' % (vr(vRes + 2 * j, 2), vr(vRes + 2 * j, 2), vr(acc + 2 * j, 2)))
            for j in range(4 * u, 4 * u + 4):
                e('v_cvt_pk_bf16_f32 v%d, v%d, v%d' % (pk + j, vRes + 2 * j, vRes + 2 * j + 1))
            if last: st(pk + 4 * u, x0, SOUT, 4, 64 * u, 'o', '')
            else: st(pk + 4 * u, vL16, SWS, 4, 1024 * u, 'o', AUX)
        if not last:
            e('v_pk_add_f32 %s, %s, %s' % (vr(sq, 2), vr(vRes, 2), vr(vRes + 2, 2)))
            e('v_pk_mul_f32 %s, %s, %s' % (vr(sq + 2, 2), vr(vRes, 2), vr(vRes, 2)))
            e('v_pk_fma_f32 %s, %s, %s, %s' % (vr(sq + 2, 2), vr(vRes + 2, 2), vr(vRes + 2, 2), vr(sq + 2, 2)))
            for j in range(2, 8):
                e('v_pk_add_f32 %s, %s, %s' % (vr(sq, 2), vr(sq, 2), vr(vRes + 2 * j, 2)))
                e('v_pk_fma_f32 %s, %s, %s, %s' % (vr(sq + 2, 2), vr(vRes + 2 * j, 2), vr(vRes + 2 * j, 2), vr(sq + 2, 2)))
            e('v_add_f32 v%d, v%d, v%d' % (sq, sq, sq + 1))
            e('v_add_f32 v%d, v%d, v%d' % (sq + 1, sq + 2, sq + 3))
            e('v_permlane32_swap_b32 v%d, v%d' % (sq, sq + 1))
            e('v_add_f32 v%d, v%d, v%d' % (sq, sq, sq + 1))
            e('v_mov_b32 v%d, v%d' % (sq + 1, sq))
            e('v_permlane16_swap_b32 v%d, v%d' % (sq, sq + 1))
            e('v_add_f32 v%d, v%d, v%d' % (sq, sq, sq + 1))
            e('s_mov_b32 exec_lo, 0xffff\ns_mov_b32 exec_hi, 0xffff')
            st(sq, vStA, SWS, 6, 0, 'o', AUX, n=1)
            e('s_mov_b64 exec, -1')
            if halo:
                Lh = lab('Lhl')
                e('s_cmp_lg_u32 s%d, 3\ns_cbranch_scc1 %s' % (sW, Lh))
                e('s_cmp_lt_u32 s%d, 8\ns_cbranch_scc1 %s' % (sM, Lh))
                e('s_add_u32 s6, s%d, 1\ns_lshl_b32 s6, s6, 15\ns_add_u32 s6, s6, 0x%x\ns_add_u32 s4, s6, s5\ns_add_u32 s6, s6, 16384' % (sTeam, HALO))
                st(pk, vL16, SWS, 4, 0, None, ' sc0 sc1', track=False)
                st(pk + 4, vL16, SWS, 4, 1024, None, ' sc0 sc1', track=False)
                e('s_mov_b32 exec_lo, 0xffff\ns_mov_b32 exec_hi, 0xffff')
                st(sq, vStA, SWS, 6, 0, None, ' sc0 sc1', n=1, track=False)
                e('s_waitcnt vmcnt(0)')
                e('v_mov_b32 v%d, 1' % x0)
                e('s_lshl_b32 s4, s%d, 2\ns_add_u32 s4, s4, s%d\ns_add_u32 s4, s4, %d' % (sCs, sFlag, 256 + 128))
                e('s_mov_b64 exec, 1')
                e('buffer_store_dword v%d, off, %s, s4 sc0 sc1' % (x0, SWS), None, False)
                e('s_mov_b64 exec, -1')
                e.label(Lh)
        stamp('end')
        for r_, n_ in ((XR, 4 * NR), (acc, 32), (rd, 16), (pk, 8), (sq, 4)): V.put(r_, n_)

    def P3(first):
        acc = V.get(48); WF = V.get(48); XR = V.get(64); stt = V.get(8); mr = V.get(4)
        wb = V.get(2)
        if first: cacc = V.get(8); cw = V.get(8); cb = V.get(2)
        A = lambda a, c: acc + (a * 6 + c) * 4
        wf = lambda ks, c: WF + ((ks & 1) * 6 + c) * 4
        xr = lambda ks, a: XR + ((ks % 8) * 2 + a) * 4
        soff_reset()
        LOOK = 5
        e('s_lshl_b32 s%d, s%d, 14\ns_add_u32 s%d, s%d, 0x%x' % (sB[2], sTile, sB[2], sB[2], X1F))

        def xload(ks):
            return [lambda a=a: ld(xr(ks, a), vL16, SWS, sB[2], a * 16384 + ks * 1024, ('X', ks)) for a in range(2)]
        for ks in range(LOOK):
            for f in xload(ks): f()
        e('s_lshl_b32 s4, s%d, 10\ns_add_u32 s4, s4, 0x%x' % (sTile, ST1))
        ld(stt, vL16, SWS, 4, 0, 'st')
        ld(stt + 4, vL16, SWS, 4, 1024, 'st')
        if first:
            e('v_add_u32 v%d, 0x%x, v%d' % (wb, SLOT0, vL16))
            e('s_lshl_b32 s4, s%d, 10\ns_add_u32 s4, s4, 2048' % sW)
            e('v_add_u32 v%d, s4, v%d' % (cb, wb))
            e('v_add_u32 v%d, s%d, v%d' % (cb + 1, sW1l, wb))
            e('s_mul_i32 s%d, s%d, 43\ns_mul_i32 s4, s%d, 11\ns_add_u32 s%d, s%d, s4\ns_lshl_b32 s%d, s%d, 12\ns_add_u32 s%d, s%d, 0x%x' % (sB[0], sCs, sW, sB[0], sB[0], sB[0], sB[0], sB[0], sB[0], W2T))
            e('s_add_u32 s4, s%d, 40960\ns_cmp_eq_u32 s%d, 3\ns_cselect_b32 s%d, 0x%x, s4' % (sB[0], sW, sB[1], OOB))
        else:
            e('v_add_u32 v%d, 49152, v%d' % (wb + 1, vL16))

        def waddr(ks):
            if first: return wb, (ks % 10) * 6144
            return (vL16, ks * 6144) if ks < 8 else (wb + 1, (ks - 8) * 6144)

        def wreads(ks):
            out = []
            b, o = waddr(ks)
            for c in range(6):
                out.append(lambda c=c: e('ds_read_b128 %s, v%d offset:%d' % (vr(wf(ks, c), 4), b, o + c * 1024), ('w', ks, c)))
            return out

        def creads(ks):
            o = (ks % 10) * 6144
            out = [lambda: e('ds_read_b128 %s, v%d offset:%d' % (vr(cw, 4), cb, o), ('c', ks))]
            if ks & 1: out.append(lambda: e('ds_read_b128 %s, v%d offset:%d' % (vr(cw + 4, 4), cb + 1, o - 6144), ('c', ks)))
            return out

        def w2load(s):
            out = []
            for c in range(4):
                if s < 10: out.append(lambda c=c: ld(64 + 16 * s + 4 * c, vL16, SWS, sB[0], s * 4096 + c * 1024, 'w2', kind='a'))
                else: out.append(lambda c=c: ld(64 + 16 * s + 4 * c, vL16, SWS, sB[1], c * 1024, 'w2', kind='a'))
            return out
        e.wait(vm=['w1a', 'w1b'])
        e('s_barrier')
        for f in wreads(0): f()
        for ks in range(16):
            fill = []
            if first and ks in (4, 6):
                e.wait(lg='all')
                e('s_barrier')
                fill += w1_issue([10, 11, 12, 13] if ks == 4 else [14, 15], True, 'w1c')
            if first and ks == 9:
                e.wait(vm='w1c')
                e('s_barrier')
            if first: fill = creads(ks) + fill
            if ks < 15: fill = zipitems(wreads(ks + 1), fill)
            if ks + LOOK < 16: fill = zipitems(fill, xload(ks + LOOK))
            if first and ks >= 11:
                fill = zipitems(fill, w2load(2 * (ks - 11)) + w2load(2 * (ks - 11) + 1))
            if ks == 2:
                e.wait(vm='st')
                fill = zipitems(fill, stats_items(stt, mr))
            if ks == 3: fill = zipitems(fill, stats_items(stt + 4, mr + 2))
            e.wait(vm=('X', ks))
            main = []
            for c in range(6):
                for a in range(2):
                    def f(c=c, a=a):
                        if a == 0 and c in (0, 3): e.wait(lg=('w', ks, c + 2))
                        mfma(A(a, c), wf(ks, c), xr(ks, a), None if ks == 0 else A(a, c))
                    main.append(f)
            weave(main, fill, 0, 2 if len(fill) > 12 else 1)
            if first:
                e.wait(lg=('c', ks))
                mfma(cacc, cw, vOnes, None if ks == 0 else cacc)
                if ks & 1: mfma(cacc + 4, cw + 4, vOnes, None if ks == 1 else cacc + 4)
        stamp('p3gemm')
        if first:
            for f in w2load(10): f()
            e('s_lshl_b32 s4, s%d, 6' % sW)
            e('v_add_u32 v%d, s4, v%d' % (x0, vCsA))
            e('s_lshr_b32 s4, s%d, 1\ns_mul_i32 s4, s4, 6\ns_and_b32 s5, s%d, 1\ns_add_u32 s4, s4, s5\ns_lshl_b32 s4, s4, 6' % (sW, sW))
            e('v_add_u32 v%d, s4, v%d' % (x2, vCsA))
            e('s_mov_b32 exec_lo, 0x00010001\ns_mov_b32 exec_hi, 0x00010001')
            e('ds_write_b128 v%d, %s offset:%d' % (x0, vr(cacc, 4), 512 + 128))
            e('ds_write_b128 v%d, %s offset:512' % (x2, vr(cacc + 4, 4)))
            e('s_mov_b64 exec, -1')
            e.wait(lg='all')
            e('s_barrier')
        cs = WF
        for j in (2, 3, 4, 5, 0, 1, 6, 7):
            e('ds_read_b128 %s, v%d offset:%d' % (vr(cs + 4 * j, 4), vCsA, 512 + j * 64), ('cs', j))
        e('s_mul_i32 s4, s%d, 43\ns_add_u32 s4, s4, s%d\ns_lshl_b32 s4, s4, 10\ns_add_u32 s4, s4, 0x%x\ns_add_u32 s5, s4, %d' % (sTile, sU0, HF, 43 * 1024))
        e('s_cmp_lt_u32 s%d, 11\ns_cselect_b32 s6, s4, 0x%x\ns_cselect_b32 s7, s5, 0x%x' % (sM, OOB, OOB))
        for j in (1, 2, 0):
            e.wait(lg=('cs', 7 if j == 0 else 2 * j + 1))
            if j == 0:
                for b in range(2):
                    for h in range(2):
                        e('v_pk_add_f32 %s, %s, %s' % (vr(cs + 4 * b + 2 * h, 2), vr(cs + 4 * b + 2 * h, 2), vr(cs + 24 + 4 * b + 2 * h, 2)))
            for a in range(2):
                o = XR + (a * 3 + j) * 4
                for f in zipitems(ln_tile(A(a, 2 * j), cs + 8 * j, mr + 2 * a, o, relu=True), ln_tile(A(a, 2 * j + 1), cs + 8 * j + 4, mr + 2 * a, o + 2, relu=True)): f()
                st(o, vL16, SWS, (6 if j == 2 else 4) + a, j * 1024, 'o', AUX)
        stamp('p3end')
        for r_, n_ in ((acc, 48), (WF, 48), (XR, 64), (stt, 8), (mr, 4), (wb, 2)): V.put(r_, n_)
        if first: V.put(cacc, 8); V.put(cw, 8); V.put(cb, 2)

    def stop(name):
        if cfg.stop == name:
            e('s_branch L_end' + sfx)

    def p2_extra():
        e('s_barrier')
        soff_reset()
        for f in w1_issue([4, 5, 6, 7, 8, 9], True, 'w1b'): f()

    P1(True); stop('p1')
    team_sync(1, 'o')
    PK(4, 0, OF, 16384, X1F, ST1, False, False, extra=p2_extra); stop('p2')
    team_sync(2, 'o')
    P3(True); stop('p3')
    team_sync(3, 'o')
    PK(11, 64, HF, 43 * 1024, X2F, ST2, False, True); stop('p4')
    team_sync(4, 'o')
    P1(False); stop('p1b')
    team_sync(5, 'o')
    PK(4, 0, OF, 16384, X1F, ST1, False, False); stop('p2b')
    team_sync(6, 'o')
    P3(False); stop('p3b')
    team_sync(7, 'o')
    PK(11, 64, HF, 43 * 1024, None, None, True, False)
    e.label('L_end' + sfx)
    if cfg.stamps:
        e('s_waitcnt vmcnt(0) lgkmcnt(0)')
        e('s_mov_b64 exec, -1')
        e('s_memtime s[4:5]\ns_memrealtime s[6:7]\ns_waitcnt lgkmcnt(0)')
        flush_stamps()
        e('v_writelane_b32 v255, s4, 62\nv_writelane_b32 v255, s6, 63')
        e('v_and_b32 v2, 63, v0\nv_lshlrev_b32 v2, 2, v2')
        e('s_lshl_b32 s4, s2, 2\ns_add_u32 s4, s4, s%d\ns_lshl_b32 s4, s4, 8\ns_add_u32 s4, s4, 0x%x' % (sW, STAMPS))
        e('buffer_store_dword v255, v2, %s, s4 offen' % SWS)
    if mode == 'f': e.label('L_exit')
    e('s_endpgm')
    return e, V.maxused, stamp_names


HEADER = open('interleave_layers__sliding_local_dilated__dense_activation_relu__prompt.s.ref').read().split('; Override')[0]


def generate(cfg):
    ef, vmax, names = build('f', cfg)
    es, _, _ = build('s', cfg)
    fast = ef.text(); slow = es.text()
    slow = slow[slow.index('L_fork_s:'):]
    s = HEADER
    s += '; @launch grid=(256,1,1) block=(256,1,1) lds=%d\n' % LDS_BYTES
    s += '.amdgcn_target "amdgcn-amd-amdhsa--gfx950"\n.text\n'
    s += '.globl %s\n.p2align 8\n.type %s,@function\n%s:\n' % (NAME, NAME, NAME)
    s += fast + 'L_fast_end:\n' + slow
    s += '.section .rodata,"a"\n.p2align 6\n.amdhsa_kernel %s\n' % NAME
    s += '  .amdhsa_next_free_vgpr 512\n  .amdhsa_next_free_sgpr 102\n  .amdhsa_accum_offset 256\n'
    s += '  .amdhsa_group_segment_fixed_size 0\n  .amdhsa_kernarg_size 72\n  .amdhsa_user_sgpr_count 2\n'
    s += '  .amdhsa_user_sgpr_kernarg_segment_ptr 1\n  .amdhsa_system_sgpr_workgroup_id_x 1\n'
    s += '  .amdhsa_float_denorm_mode_32 3\n.end_amdhsa_kernel\n'
    import subprocess, tempfile, os
    d = tempfile.mkdtemp()
    open(d + '/a.s', 'w').write(s.replace('CODE_BYTES', '0x12345'))
    subprocess.check_call(['clang', '-x', 'assembler', '-target', 'amdgcn-amd-amdhsa', '-mcpu=gfx950', '-c', d + '/a.s', '-o', d + '/a.o'])
    sy = subprocess.check_output(['llvm-readelf', '-s', d + '/a.o']).decode()
    size = [int(l.split()[1], 16) for l in sy.split('\n') if l.endswith(' L_fast_end')][0]
    s = s.replace('CODE_BYTES', '0x%x' % (size & ~127))
    return s, dict(vmax=vmax, nins=ef.nins, nops=ef.nops, stamps=names, size=size)


if __name__ == '__main__':
    cfg = Cfg()
    out = sys.argv[1]
    for a in sys.argv[2:]:
        k, v = a.split('=')
        setattr(cfg, k, {'1': True, '0': False}.get(v, v))
    s, info = generate(cfg)
    open(out, 'w').write(s)
    print(info)
```

```python
import sys
from em import *

NAME = 'interleave_layers__sliding_local_dilated__dense_activation_relu__prompt_kernel'

WOT = 0x000000; W2T = 0x080000; W1T = 0x200000
OF = 0x400000; X1F = 0x600000; X2F = 0x800000; HF = 0xA00000
ST0 = 0x1000000; ST1 = 0x1020000; ST2 = 0x1040000
HALO = 0x1080000; FLAGS = 0x1110000; STAMPS = 0x1200000; WS_SIZE = 0x1400000
OOB = 0x80000000
R = 98304
CSQ = R; CS1 = R + 512
SLOT0 = R + 2048
R2 = R + 32768
VIMG = R2; KIMG = R2 + 9216
LDS_BYTES = 163840
SPIN = 1 << 20


class Cfg:
    stamps = False
    stop = None
    force_slow = False
    fine = None


def build(mode, cfg):
    e = Em()
    sfx = '_' + mode
    AUX = '' if mode == 'f' else ' sc0 sc1'
    V = Alloc('v', 1, 256)
    S = Alloc('s', 48, 80)
    lab = lambda p: e.newlabel(p + sfx)
    SX, SWQ, SPP, SWS, SOUT, SDBG = 's[24:27]', 's[28:31]', 's[32:35]', 's[36:39]', 's[40:43]', 's[44:47]'
    stamp_names = []

    pend_st = []
    if cfg.stamps: V.free[255] = False

    def stamp(name, grp=None):
        if cfg.stamps and (grp is None or grp == cfg.fine):
            if len(pend_st) == 11: flush_stamps()
            i = len(pend_st)
            assert len(stamp_names) < 62
            pend_st.append(len(stamp_names))
            stamp_names.append(name)
            e('s_memtime s[%d:%d]' % (80 + 2 * i, 81 + 2 * i))

    def flush_stamps():
        if cfg.stamps and pend_st:
            e('s_waitcnt lgkmcnt(0)')
            for i, j in enumerate(pend_st): e('v_writelane_b32 v255, s%d, %d' % (80 + 2 * i, j))
            pend_st.clear()

    sW, sTeam, sM = 48, 49, 50
    for x in (48, 49, 50): S.free[x] = False
    sFlag = S.get(); sTile = S.get(); sCs = S.get(); sOwn = S.get(); sU0 = S.get()
    sPar = S.get(2); sCur0 = S.get(2); sCur1 = S.get(2)
    t0, t1, t2, t3, t4, t5 = 4, 5, 6, 7, 8, 9
    sB = [10, 11, 12, 13]
    sSpin = 14
    sOffC = [16, 17, 18]
    sPP = [20, 21, 22, 23]
    offc = {'held': [None] * 3, 'n': 0}

    def soff(base, off):
        hi = off & ~4095; lo = off & 4095
        if hi == 0: return base, lo
        key = (base, hi)
        if key in offc['held']: return sOffC[offc['held'].index(key)], lo
        i = offc['n'] % 3; offc['n'] += 1
        offc['held'][i] = key
        e('s_add_u32 s%d, s%d, 0x%x' % (sOffC[i], base, hi))
        return sOffC[i], lo

    def soff_reset(): offc['held'] = [None] * 3

    def imm(o): return ' offset:%d' % o if o else ''

    def ld(dst, vaddr, srd, base, off, tag, aux=' sc1', n=4, kind='v'):
        s, o = soff(base, off)
        d = vr(dst, n) if kind == 'v' else ar(dst, n)
        e('buffer_load_dword%s %s, v%d, %s, s%d offen%s%s' % ('x%d' % n if n > 1 else '', d, vaddr, srd, s, imm(o), aux), tag)

    def st(src, vaddr, srd, base, off, tag, aux, n=4, track=True):
        s, o = soff(base, off)
        e('buffer_store_dword%s %s, v%d, %s, s%d offen%s%s' % ('x%d' % n if n > 1 else '', vr(src, n), vaddr, srd, s, imm(o), aux), tag, track)

    def dma(vaddr, srd, base, off, ldsreg, ldsoff, tag, aux='', track=True):
        s, o = soff(base, off)
        lo = ldsoff - o
        if ldsreg is None:
            assert lo >= 0
            e('s_mov_b32 m0, 0x%x' % lo)
        elif lo >= 0: e('s_add_u32 m0, s%d, 0x%x' % (ldsreg, lo))
        else: e('s_sub_u32 m0, s%d, 0x%x' % (ldsreg, -lo))
        e('buffer_load_dwordx4 v%d, %s, s%d offen%s%s lds' % (vaddr, srd, s, imm(o), aux), tag, track)

    def mfma(d, a, b, c, akind='v'):
        A = vr(a, 4) if akind == 'v' else ar(a, 4)
        e('v_mfma_f32_16x16x32_bf16 %s, %s, %s, %s' % (vr(d, 4), A, vr(b, 4), '0' if c is None else vr(c, 4)))

    def weave(main, fill, start=0, per=1):
        fill = list(fill)
        for i, m in enumerate(main):
            m()
            if i >= start:
                for _ in range(per):
                    if fill: fill.pop(0)()
        for f in fill: f()

    def spin_guard(loop):
        e('s_sub_u32 s%d, s%d, 1' % (sSpin, sSpin))
        e('s_cbranch_scc1 L_end' + sfx)
        e('s_branch ' + loop)

    e('s_cmp_ge_u32 s2, 256')
    e('s_cbranch_scc1 L_exit')
    e('s_load_dwordx16 s[4:19], s[0:1], 0')
    e('s_load_dwordx2 s[20:21], s[0:1], 64')
    stamp('start')
    vL = V.get(); vT = V.get(); vG = V.get(); vL16 = V.get()
    x0 = V.get(); x1 = V.get(); x2 = V.get(); x3 = V.get()
    e('v_lshrrev_b32 v%d, 6, v0' % x0)
    e('v_and_b32 v%d, 63, v0' % vL)
    e('v_readfirstlane_b32 s%d, v%d' % (sW, x0))
    e('v_and_b32 v%d, 15, v0' % vT)
    e('v_lshrrev_b32 v%d, 4, v%d' % (vG, vL))
    e('v_lshlrev_b32 v%d, 4, v%d' % (vL16, vL))
    e('s_and_b32 s%d, s2, 7' % sTeam)
    e('s_lshl_b32 s%d, s%d, 1' % (sTeam, sTeam))
    e('s_lshr_b32 s3, s2, 7')
    e('s_add_u32 s%d, s%d, s3' % (sTeam, sTeam))
    e('s_lshr_b32 s%d, s2, 3' % sM)
    e('s_and_b32 s%d, s%d, 15' % (sM, sM))
    e('s_and_b32 s%d, s%d, 7' % (sCs, sM))
    e('s_lshl_b32 s%d, s%d, 8' % (sFlag, sTeam))
    e('s_add_u32 s%d, s%d, 0x%x' % (sFlag, sFlag, FLAGS))
    e('s_lshl_b32 s%d, s%d, 3' % (sTile, sTeam))
    e('s_lshr_b32 s3, s%d, 3' % sM)
    e('s_lshl_b32 s3, s3, 2')
    e('s_add_u32 s%d, s%d, s3' % (sOwn, sTile))
    e('s_lshl_b32 s3, s%d, 1' % sW)
    e('s_add_u32 s%d, s%d, s3' % (sTile, sTile))
    e('s_mul_i32 s%d, s%d, 3' % (sU0, sM))
    e('s_lshl_b32 s3, s%d, 1' % sM)
    e('s_add_u32 s3, s3, 11')
    e('s_min_u32 s%d, s%d, s3' % (sU0, sU0))
    vWa = [V.get(), V.get()]; vWaH = [V.get(), V.get()]
    vWd = V.get(); vXd = V.get(); vXr = V.get(); vHr = V.get()
    e('v_bfe_u32 v%d, v%d, 2, 2' % (x0, vL))
    e('v_and_b32 v%d, 3, v%d' % (x1, vL))
    e('v_lshl_add_u32 v%d, v%d, 3, v%d' % (x2, vG, x0))
    e('v_lshlrev_b32 v%d, 6, v%d' % (x2, x2))
    e('v_lshl_add_u32 v%d, v%d, 3, v%d' % (x2, x1, x2))
    e('v_and_b32 v%d, 1, v%d' % (x3, vG))
    e('v_lshl_add_u32 v%d, v%d, 5, v%d' % (vWa[0], x3, x2))
    e('v_xor_b32 v%d, 32, v%d' % (vWa[1], vWa[0]))
    e('v_add_u32 v%d, 49152, v%d' % (vWaH[0], vWa[0]))
    e('v_add_u32 v%d, 49152, v%d' % (vWaH[1], vWa[1]))
    e('v_lshrrev_b32 v%d, 4, v%d' % (x2, vL))
    e('v_and_b32 v%d, 2, v%d' % (x2, x2))
    e('v_xor_b32 v%d, v%d, v%d' % (x2, x2, x1))
    e('v_lshrrev_b32 v%d, 2, v%d' % (x3, vL))
    e('v_mul_u32_u24 v%d, 3072, v%d' % (vWd, x3))
    e('v_lshl_add_u32 v%d, v%d, 4, v%d' % (vWd, x2, vWd))

    def swz(dst, src, tmp):
        e('v_lshrrev_b32 v%d, 1, v%d' % (tmp, src))
        e('v_mul_u32_u24 v%d, 3, v%d' % (tmp, tmp))
        e('v_and_b32 v%d, 1, v%d' % (dst, src))
        e('v_lshlrev_b32 v%d, 1, v%d' % (dst, dst))
        e('v_xor_b32 v%d, v%d, v%d' % (dst, dst, tmp))
    swz(x2, vG, vXd)
    e('v_xor_b32 v%d, v%d, v%d' % (x2, x2, x1))
    e('v_lshlrev_b32 v%d, 10, v%d' % (vXd, x3))
    e('v_lshl_add_u32 v%d, v%d, 4, v%d' % (vXd, x2, vXd))
    swz(x2, x0, vHr)
    e('v_xor_b32 v%d, v%d, v%d' % (x2, x2, vG))
    e('v_lshlrev_b32 v%d, 6, v%d' % (vHr, vT))
    e('v_lshl_add_u32 v%d, v%d, 4, v%d' % (vHr, x2, vHr))
    e('s_lshl_b32 s3, s%d, 13' % sW)
    e('s_add_u32 s3, s3, 0x%x' % R)
    e('v_add_u32 v%d, s3, v%d' % (vXr, vHr))
    e('v_add_u32 v%d, 0x%x, v%d' % (vHr, R + 4096, vHr))
    sXslot = S.get()
    e('s_mov_b32 s%d, s3' % sXslot)

    e('s_waitcnt lgkmcnt(0)')
    stamp('karg', 'a')
    for srd, p, size in ((24, 4, 2048 * 1024), (28, 6, 512 * 3072), (36, 20, WS_SIZE), (40, 16, 2048 * 1024), (44, 18, 256)):
        e('s_mov_b32 s%d, s%d\ns_mov_b32 s%d, s%d\ns_mov_b32 s%d, 0x%x\ns_mov_b32 s%d, 0x20000' % (srd, p, srd + 1, p + 1, srd + 2, size, srd + 3))
    e('s_lshl_b32 s3, s%d, 8' % sW)
    e('s_add_u32 s3, s3, s2')
    e('s_mov_b32 s35, 0x20000')
    Lw2, Lw1, Lpp = lab('Lw2'), lab('Lw1'), lab('Lpp')
    e('s_cmp_ge_u32 s3, 128')
    e('s_cbranch_scc1 ' + Lw2)
    e('s_mov_b32 s32, s8\ns_mov_b32 s33, s9\ns_mov_b32 s34, 0x%x' % (512 * 1024))
    e('s_and_b32 s4, s3, 7\ns_lshr_b32 s5, s3, 3')
    e('s_lshl_b32 s20, s5, 15\ns_lshl_b32 s6, s4, 7\ns_add_u32 s20, s20, s6')
    e('s_lshl_b32 s21, s4, 4\ns_add_u32 s21, s21, s5\ns_lshl_b32 s21, s21, 12')
    e('s_mov_b32 s22, 1024\ns_mov_b32 s23, 0')
    e('s_branch ' + Lpp)
    e.label(Lw2)
    e('s_cmp_ge_u32 s3, 472')
    e('s_cbranch_scc1 ' + Lw1)
    e('s_mov_b32 s32, s14\ns_mov_b32 s33, s15\ns_mov_b32 s34, 0x%x' % (1376 * 1024))
    e('s_sub_u32 s3, s3, 128')
    e('s_and_b32 s4, s3, 7\ns_lshr_b32 s5, s3, 3')
    e('s_lshl_b32 s20, s5, 15\ns_lshl_b32 s6, s4, 7\ns_add_u32 s20, s20, s6')
    e('s_mul_i32 s21, s4, 43\ns_add_u32 s21, s21, s5\ns_lshl_b32 s21, s21, 12\ns_add_u32 s21, s21, 0x%x' % W2T)
    e('s_mov_b32 s22, 1024\ns_mov_b32 s23, 0')
    e('s_branch ' + Lpp)
    e.label(Lw1)
    e('s_mov_b32 s32, s12\ns_mov_b32 s33, s13\ns_mov_b32 s34, 0x%x' % (512 * 2752))
    e('s_cmp_ge_u32 s3, 824')
    e('s_cselect_b32 s23, 2, 1')
    e('s_sub_u32 s3, s3, 472')
    e('s_and_b32 s5, s3, 15\ns_lshr_b32 s4, s3, 4')
    e('s_mul_i32 s20, s5, %d\ns_lshl_b32 s6, s4, 7\ns_add_u32 s20, s20, s6' % (32 * 2752))
    e('s_lshl_b32 s21, s4, 5\ns_add_u32 s21, s21, s5\ns_lshl_b32 s21, s21, 11\ns_add_u32 s21, s21, 0x%x' % W1T)
    e('s_mov_b32 s22, 2752')
    e.label(Lpp)
    e('s_mov_b32 s%d, 0x%x' % (sSpin, SPIN))

    e('v_mov_b32 v%d, 0' % x0)
    e('s_lshl_b32 s4, s%d, 2\ns_add_u32 s4, s4, s%d' % (sM, sFlag))
    e('s_add_u32 s5, s4, %d' % (256 + 128 - 32))
    e('s_cmp_eq_u32 s%d, 0\ns_cselect_b32 s4, s4, 0x%x' % (sW, OOB))
    e('s_cmp_ge_u32 s%d, 8\ns_cselect_b32 s5, s5, 0x%x' % (sM, OOB))
    e('s_cmp_eq_u32 s%d, 3\ns_cselect_b32 s4, s5, s4' % sW)
    e('s_mov_b64 exec, 1')
    e('buffer_store_dword v%d, off, %s, s4 sc0 sc1' % (x0, SWS), 'z')
    e('s_mov_b64 exec, -1')
    vRow = V.get(8)
    e('s_lshl_b32 s4, s%d, 7\ns_lshl_b32 s5, s%d, 3\ns_add_u32 s4, s4, s5\ns_lshl_b32 s5, s%d, 1\ns_add_u32 s4, s4, s5' % (sTeam, sM, sW))
    e('s_mov_b32 s%d, s4' % sB[3])
    e('s_lshl_b32 s4, s4, 10')
    ld(vRow, vL16, SX, 4, 0, 'row', aux='')
    ld(vRow + 4, vL16, SX, 4, 1024, 'row', aux='')
    e('s_getpc_b64 s[6:7]')
    e('s_lshr_b32 s5, s2, 3\ns_lshl_b32 s5, s5, 11')
    e('s_lshl_b32 s8, s%d, 9\ns_add_u32 s5, s5, s8' % sW)
    e('v_and_b32 v%d, 3, v%d' % (x0, vL))
    e('v_lshl_add_u32 v%d, v%d, 7, s5' % (x0, x0))
    e('v_min_u32 v%d, CODE_BYTES, v%d' % (x0, x0))
    e('global_load_dword v%d, v%d, s[6:7]' % (x1, x0), 'code')
    vPd = V.get()
    Lnp = lab('Lnp')
    e('v_lshrrev_b32 v%d, 3, v%d' % (x2, vL))
    e('v_and_b32 v%d, 7, v%d' % (x3, vL))
    e('v_mul_lo_u32 v%d, s22, v%d' % (vPd, x2))
    e('v_lshl_add_u32 v%d, v%d, 4, v%d' % (vPd, x3, vPd))
    e('s_cmp_eq_u32 s23, 2')
    e('s_cbranch_scc1 ' + Lnp)
    e('s_lshl_b32 s4, s22, 3')
    for i in range(4):
        e('s_add_u32 m0, s%d, 0x%x' % (sXslot, 32768 + i * 1024))
        e('buffer_load_dwordx4 v%d, %s, s20 offen lds' % (vPd, SPP), None, False)
        if i < 3: e('s_add_u32 s20, s20, s4')
    e.label(Lnp)
    e('v_lshlrev_b32 v%d, 10, v%d' % (vPd, x2))
    e('v_lshl_add_u32 v%d, v%d, 4, v%d' % (vPd, x3, vPd))
    e('s_add_u32 s4, s%d, s%d\ns_lshl_b32 s4, s4, 14\ns_lshl_b32 s5, s%d, 7\ns_add_u32 s4, s4, s5' % (sOwn, sW, sCs))
    dma(vPd, SX, 4, 0, sXslot, 32768 + 4096, 'res')
    dma(vPd, SX, 4, 8192, sXslot, 32768 + 5120, 'res')
    V.put(vPd)
    soff_reset()

    e('s_mul_i32 s%d, s%d, %d\ns_lshl_b32 s4, s%d, 6\ns_add_u32 s%d, s%d, s4' % (sB[0], sW, 32 * 3072, sM, sB[0], sB[0]))
    e('s_mul_i32 s%d, s%d, 6144' % (sB[1], sW))
    e('s_lshl_b32 s%d, s%d, 14' % (sB[2], sTile))

    def w_dma(G):
        out = []
        for sec in range(3):
            for half in range(2):
                def f(sec=sec, half=half):
                    goff = (128 * G + 16 * half) * 3072 + sec * 1024
                    e('s_add_u32 s%d, s%d, 0x%x' % (t5, sB[0], goff))
                    dma(vWd, SWQ, t5, 0, sB[1], G * 24576 + sec * 2048 + half * 1024, ('W', G))
                out.append(f)
        return out

    def x_dma(G):
        out = []
        for a in range(2):
            for j in range(4):
                def f(a=a, j=j):
                    dma(vXd, SX, sB[2], a * 16384 + G * 256 + j * 64, sXslot, (G & 1) * 32768 + (a * 4 + j) * 1024, ('X', G))
                out.append(f)
        return out

    stamp('i0', 'a')
    for f in w_dma(0): f()
    stamp('iW0', 'a')
    for f in x_dma(0): f()
    stamp('iX0', 'a')
    for f in w_dma(1): f()
    stamp('issued')

    vMA = V.get(4)
    vOnes = V.get(4)
    vBias = V.get(4)
    vPoll = V.get(); vStA = V.get(); vVw = V.get(); vL8 = V.get(); vHw = V.get(); vWh = V.get(); vWhH = V.get()
    vCsA = V.get(); vRedW = V.get(3); vRedR = V.get()
    e('v_and_b32 v%d, 1, v%d' % (x0, vT))
    e('v_cmp_eq_u32 s[%d:%d], 1, v%d' % (sPar, sPar + 1, x0))
    e('v_lshl_add_u32 v%d, v%d, 2, v%d' % (x2, vG, x0))
    e('v_cmp_le_u32 s[%d:%d], v%d, v%d' % (sCur0, sCur0 + 1, x2, vT))
    e('v_add_u32 v%d, 2, v%d' % (x2, x2))
    e('v_cmp_le_u32 s[%d:%d], v%d, v%d' % (sCur1, sCur1 + 1, x2, vT))
    e('v_lshlrev_b32 v%d, 4, v%d' % (x0, x0))
    e('v_mov_b32 v%d, 0xffff' % x2)
    e('v_lshlrev_b32 v%d, v%d, v%d' % (x2, x0, x2))
    e('v_cndmask_b32 v%d, v%d, 0, s[%d:%d]' % (vMA + 0, x2, sCur0, sCur0 + 1))
    e('v_cndmask_b32 v%d, v%d, 0, s[%d:%d]' % (vMA + 1, x2, sCur1, sCur1 + 1))
    e('v_cndmask_b32 v%d, 0, v%d, s[%d:%d]' % (vMA + 2, x2, sCur0, sCur0 + 1))
    e('v_cndmask_b32 v%d, 0, v%d, s[%d:%d]' % (vMA + 3, x2, sCur1, sCur1 + 1))
    e('s_cmp_eq_u32 s%d, 0\ns_cselect_b32 s4, 0xf149f2ca, 0' % sTile)
    for i in range(4):
        e('v_mov_b32 v%d, 0x3f803f80' % (vOnes + i))
        e('v_mov_b32 v%d, s4' % (vBias + i))
    e('v_lshlrev_b32 v%d, 2, v%d' % (vPoll, vT))
    e('s_lshr_b32 s4, s%d, 1\ns_lshl_b32 s4, s4, 8\ns_and_b32 s5, s%d, 1\ns_lshl_b32 s5, s5, 3\ns_add_u32 s4, s4, s5' % (sCs, sCs))
    e('v_lshrrev_b32 v%d, 1, v%d' % (x0, vG))
    e('v_lshl_add_u32 v%d, v%d, 2, s4' % (x0, x0))
    e('v_lshl_add_u32 v%d, v%d, 4, v%d' % (vStA, vT, x0))
    e('v_lshlrev_b32 v%d, 3, v%d' % (vL8, vL))
    e('v_lshlrev_b32 v%d, 3, v%d' % (x0, vG))
    e('v_lshl_add_u32 v%d, v%d, 5, v%d' % (x0, vT, x0))
    e('s_lshl_b32 s4, s%d, 11\ns_add_u32 s4, s4, 0x%x' % (sW, VIMG + 1024))
    e('v_add_u32 v%d, s4, v%d' % (vVw, x0))
    e('s_and_b32 s4, s%d, 1\ns_lshl_b32 s4, s4, 9' % sW)
    e('s_add_u32 s5, s4, 0x%x\ns_add_u32 s4, s4, 0x%x' % (KIMG, VIMG))
    e('v_add_u32 v%d, s4, v%d' % (x0, x0))
    e('v_add_u32 v%d, s5, v%d' % (x2, vL8))
    e('s_cmp_lt_u32 s%d, 2\ns_cselect_b64 vcc, -1, 0' % sW)
    e('v_cndmask_b32 v%d, v%d, v%d, vcc' % (vHw, x0, x2))
    e('s_and_b32 s4, s%d, 1\ns_lshl_b32 s4, s4, 5' % sW)
    e('v_xor_b32 v%d, s4, v%d' % (vWh, vWa[0]))
    vWq = V.get()
    e('s_lshr_b32 s4, s%d, 1\ns_mul_i32 s5, s4, 49152' % sW)
    e('v_add_u32 v%d, s5, v%d' % (vWq, vWh))
    e('s_lshl_b32 s4, s4, 11\ns_add_u32 s4, s4, 2048')
    e('v_add_u32 v%d, s4, v%d' % (vWh, vWh))
    e('v_add_u32 v%d, 49152, v%d' % (vWhH, vWh))
    e('v_lshlrev_b32 v%d, 4, v%d' % (vCsA, vG))
    e('v_add_u32 v%d, 0x%x, v%d' % (vCsA, R, vCsA))
    for a in (1, 2, 3):
        e('s_xor_b32 s4, s%d, %d\ns_lshl_b32 s4, s4, 12\ns_add_u32 s4, s4, 0x%x' % (sW, a, R2))
        e('v_add_u32 v%d, s4, v%d' % (vRedW + a - 1, vL16))
    e('s_lshl_b32 s4, s%d, 12\ns_add_u32 s4, s4, 0x%x' % (sW, R2))
    e('v_add_u32 v%d, s4, v%d' % (vRedR, vL16))

    e.wait(vm='row')
    stamp('row', 'a')
    tmp = V.get(12)
    for i in range(2):
        for j in range(4):
            e('v_lshlrev_b32 v%d, 16, v%d' % (tmp + 2 * j, vRow + 4 * i + j))
            e('v_and_b32 v%d, 0xffff0000, v%d' % (tmp + 2 * j + 1, vRow + 4 * i + j))
        sq = tmp + 8 + 2 * i
        e('v_add_f32 v%d, v%d, v%d' % (sq, tmp, tmp + 1))
        e('v_mul_f32 v%d, v%d, v%d' % (sq + 1, tmp, tmp))
        e('v_fmac_f32 v%d, v%d, v%d' % (sq + 1, tmp + 1, tmp + 1))
        for j in range(2, 8):
            e('v_add_f32 v%d, v%d, v%d' % (sq, sq, tmp + j))
            e('v_fmac_f32 v%d, v%d, v%d' % (sq + 1, tmp + j, tmp + j))
    for dpp in ('quad_perm:[1,0,3,2]', 'quad_perm:[2,3,0,1]', 'row_half_mirror'):
        for j in range(4):
            e('v_add_f32_dpp v%d, v%d, v%d %s row_mask:0xf bank_mask:0xf' % (tmp + 8 + j, tmp + 8 + j, tmp + 8 + j, dpp))
    e('v_lshlrev_b32 v%d, 8, v%d' % (x0, vG))
    e('v_and_b32 v%d, 8, v%d' % (x2, vL))
    e('v_add_u32 v%d, v%d, v%d' % (x0, x0, x2))
    e('s_lshr_b32 s4, s%d, 4\ns_lshl_b32 s4, s4, 10\ns_and_b32 s5, s%d, 15\ns_lshl_b32 s5, s5, 4\ns_add_u32 s4, s4, s5\ns_add_u32 s4, s4, 0x%x' % (sB[3], sB[3], ST0))
    e('s_mov_b32 exec_lo, 0x01010101\ns_mov_b32 exec_hi, 0x01010101')
    st(tmp + 8, x0, SWS, 4, 0, 'z', ' sc0 sc1', n=2)
    st(tmp + 10, x0, SWS, 4, 16, 'z', ' sc0 sc1', n=2)
    e('s_mov_b64 exec, -1')
    V.put(vRow, 8); V.put(tmp, 12)

    e.wait(vm='res')
    stamp('res', 'a')
    vRes = V.get(16)
    tmp = V.get(16)
    e('v_lshlrev_b32 v%d, 7, v%d' % (x0, vT))
    e('v_lshl_add_u32 v%d, v%d, 4, v%d' % (x0, vG, x0))
    e('v_add_u32 v%d, s%d, v%d' % (x0, sXslot, x0))
    e('ds_read_b128 %s, v%d offset:%d' % (vr(tmp, 4), x0, 32768 + 4096))
    e('ds_read_b128 %s, v%d offset:%d' % (vr(tmp + 4, 4), x0, 32768 + 4096 + 64))
    e.wait(lg='all')
    for j in range(8):
        e('v_lshlrev_b32 v%d, 16, v%d' % (vRes + 2 * j, tmp + j))
        e('v_and_b32 v%d, 0xffff0000, v%d' % (vRes + 2 * j + 1, tmp + j))
    LB, Lst, Lno = lab('LB'), lab('Lst'), lab('Lno')
    e('v_bfe_u32 v%d, v%d, 2, 2' % (x2, vL))
    e('v_and_b32 v%d, 3, v%d' % (x3, vL))
    e('s_cmp_eq_u32 s23, 2')
    e('s_cbranch_scc1 ' + Lno)
    e('s_cmp_eq_u32 s23, 1')
    e('s_cbranch_scc1 ' + LB)
    e('v_lshl_add_u32 v%d, v%d, 2, v%d' % (x0, vG, x2))
    e('v_lshlrev_b32 v%d, 7, v%d' % (x0, x0))
    e('v_lshl_add_u32 v%d, v%d, 4, v%d' % (x0, x3, x0))
    e('v_add_u32 v%d, s%d, v%d' % (x0, sXslot, x0))
    for u in range(2):
        for b in range(2):
            for hh in range(2):
                e('ds_read_b64_tr_b16 %s, v%d offset:%d' % (vr(tmp + 8 * u + 4 * b + 2 * hh, 2), x0, 32768 + hh * 2048 + 64 * u + 8 * b), None, False)
    e('s_mov_b32 s5, 2048')
    e('s_branch ' + Lst)
    e.label(LB)
    e('v_lshl_add_u32 v%d, v%d, 3, v%d' % (x0, vG, x2))
    e('v_lshlrev_b32 v%d, 7, v%d' % (x0, x0))
    e('v_lshl_add_u32 v%d, v%d, 3, v%d' % (x0, x3, x0))
    e('v_add_u32 v%d, s%d, v%d' % (x0, sXslot, x0))
    for u in range(2):
        for b in range(2):
            for hh in range(2):
                e('ds_read_b64_tr_b16 %s, v%d offset:%d' % (vr(tmp + 8 * u + 4 * b + 2 * hh, 2), x0, 32768 + hh * 512 + 64 * u + 32 * b), None, False)
    e('s_mov_b32 s5, 32768')
    e.label(Lst)
    e('s_add_u32 s5, s5, s21')
    e('s_waitcnt lgkmcnt(0)')
    st(tmp, vL16, SWS, 21, 0, None, ' sc0 sc1', track=False)
    st(tmp + 4, vL16, SWS, 21, 1024, None, ' sc0 sc1', track=False)
    st(tmp + 8, vL16, SWS, 5, 0, None, ' sc0 sc1', track=False)
    st(tmp + 12, vL16, SWS, 5, 1024, None, ' sc0 sc1', track=False)
    e.label(Lno)
    V.put(tmp, 16)
    stamp('ppst', 'a')
    for f in x_dma(1) + w_dma(2): f()
    stamp('prepass')

    def stats_items(src, dst):
        it = []
        A = it.append
        A(lambda: e('v_pk_add_f32 %s, %s, %s' % (vr(src, 2), vr(src, 2), vr(src + 2, 2))))
        A(lambda: e('v_permlane32_swap_b32 v%d, v%d' % (src, src + 1)))
        A(lambda: e('v_add_f32 v%d, v%d, v%d' % (src, src, src + 1)))
        A(lambda: e('v_mov_b32 v%d, v%d' % (src + 1, src)))
        A(lambda: e('v_permlane16_swap_b32 v%d, v%d' % (src, src + 1)))
        A(lambda: e('v_add_f32 v%d, v%d, v%d' % (src, src, src + 1)))
        A(lambda: e('v_mov_b32 v%d, v%d' % (src + 1, src)))
        A(lambda: e('v_permlane32_swap_b32 v%d, v%d' % (src, src + 1)))
        A(lambda: e('v_mul_f32 v%d, 0xbb000000, v%d' % (dst, src)))
        A(lambda: e('v_mul_f32 v%d, 0x3b000000, v%d' % (src + 1, src + 1)))
        A(lambda: e('v_fma_f32 v%d, -v%d, v%d, v%d' % (src + 1, dst, dst, src + 1)))
        A(lambda: e('v_max_f32 v%d, 0, v%d' % (src + 1, src + 1)))
        A(lambda: e('v_add_f32 v%d, 0x3727c5ac, v%d' % (src + 1, src + 1)))
        A(lambda: e('v_rsq_f32 v%d, v%d' % (dst + 1, src + 1)))
        return it

    def zipitems(*lists):
        out = []
        for i in range(max(len(l) for l in lists)):
            for l in lists:
                if i < len(l): out.append(l[i])
        return out

    def ln_tile(acc, cs, mr, out, scale=True, relu=False):
        it = []
        for h in range(2):
            it.append(lambda h=h: e('v_pk_fma_f32 %s, %s, %s, %s op_sel:[0,0,0] op_sel_hi:[1,0,1]' % (vr(acc + 2 * h, 2), vr(cs + 2 * h, 2), vr(mr, 2), vr(acc + 2 * h, 2))))
        if scale:
            for h in range(2):
                it.append(lambda h=h: e('v_pk_mul_f32 %s, %s, %s op_sel:[0,1] op_sel_hi:[1,1]' % (vr(acc + 2 * h, 2), vr(acc + 2 * h, 2), vr(mr, 2))))
        for h in range(2):
            it.append(lambda h=h: e('v_cvt_pk_bf16_f32 v%d, v%d, v%d' % (out + h, acc + 2 * h, acc + 2 * h + 1)))
        if relu:
            for h in range(2):
                it.append(lambda h=h: e('v_pk_max_i16 v%d, v%d, 0' % (out + h, out + h)))
        return it

    def team_sync(p, tag, after_flag=None):
        flush_stamps()
        e.wait(vm=tag)
        stamp('acked')
        e('s_barrier')
        Ln, Lp, Lq = lab('Ln'), lab('Lp'), lab('Lq')
        e('s_cmp_lg_u32 s%d, 0' % sW)
        e('s_cbranch_scc1 ' + Ln)
        e('v_mov_b32 v%d, %d' % (x0, p))
        e('s_lshl_b32 s4, s%d, 2\ns_add_u32 s4, s4, s%d' % (sM, sFlag))
        e('s_mov_b64 exec, 1')
        e('buffer_store_dword v%d, off, %s, s4%s' % (x0, SWS, AUX), None, False)
        e('s_mov_b64 exec, -1')
        e.label(Lp)
        e('buffer_load_dword v%d, v%d, %s, s%d offen sc1' % (x0, vPoll, SWS, sFlag), None, False)
        e('s_waitcnt vmcnt(0)')
        e('v_cmp_gt_u32 vcc, %d, v%d' % (p, x0))
        e('s_cbranch_vccz ' + Ln)
        spin_guard(Lp)
        e.label(Ln)
        e('s_barrier')
        stamp('synced')

    def w1_dma(ks, first, tag):
        out = []
        base = (SLOT0 + (ks % 10) * 6144) if first else ks * 6144
        for j in range(3):
            for b in range(2):
                out.append((j * 32768 + ks * 2048 + b * 1024, base + j * 2048 + b * 1024))
        return out

    def w1_issue(kss, first, tag):
        items = []
        assert len(kss) % 2 == 0
        for i in range(0, len(kss), 2):
            ks = kss[i]
            assert kss[i + 1] == ks + 1 and (not first or ks % 10 != 9)
            base = (SLOT0 + (ks % 10) * 6144) if first else ks * 6144
            for j in range(3):
                items.append(lambda ks=ks, j=j, base=base: dma(vL16, SWS, sW1g, j * 32768 + ks * 2048, sW1l, base + j * 2048, tag, aux=' sc1'))
        return items

    sW1g = S.get(); sW1l = S.get()

    def P1(first):
        acc = V.get(48); hacc = V.get(4)
        WF = V.get(48); XR = V.get(64)
        stt = V.get(12); mr = V.get(6)
        cacc = V.get(8) if first else None
        A = lambda a, c: acc + (a * 6 + c) * 4
        wf = lambda ks, c: WF + ((ks & 1) * 6 + c) * 4
        xr = lambda ks, a: XR + ((ks % 8) * 2 + a) * 4
        soff_reset()

        def wreads(ks):
            out = []
            for c in range(6):
                for h in range(2):
                    def f(c=c, h=h):
                        base = vWa if ks < 8 else vWaH
                        e('ds_read_b64_tr_b16 %s, v%d offset:%d' % (vr(wf(ks, c) + 2 * h, 2), base[c & 1], (ks & 7) * 6144 + (c >> 1) * 2048 + h * 256), ('w', ks, c))
                    out.append(f)
            return out

        def xreads(G):
            out = []
            for j in range(4):
                for a in range(2):
                    out.append(lambda a=a, j=j: e('ds_read_b128 %s, v%d offset:%d' % (vr(xr(4 * G + j, a), 4), vXr, (G & 1) * 32768 + (a * 4 + j) * 1024), ('x', G)))
            return out

        def xload(ks):
            return [lambda a=a: ld(xr(ks, a), vL16, SWS, sB[2], a * 16384 + ks * 1024, ('X', ks)) for a in range(2)]

        def halo_dma():
            out = []
            for j in range(4):
                if first: out.append(lambda j=j: dma(vXd, SX, sB[3], j * 64, sXslot, 4096 + j * 1024, 'halo'))
                else: out.append(lambda j=j: dma(vL16, SWS, sB[3], j * 1024, sXslot, 4096 + j * 1024, 'halo', aux=' sc1'))
            return out

        LOOK = 5
        if first:
            e('s_lshl_b32 s4, s%d, 17\ns_sub_u32 s4, s4, 16384\ns_lshl_b32 s5, s%d, 8\ns_add_u32 s4, s4, s5' % (sTeam, sW))
            e('s_cmp_eq_u32 s%d, 0\ns_cselect_b32 s%d, 0x%x, s4' % (sTeam, sB[3], OOB))
            e.wait(vm=[('W', 0), ('X', 0)])
            e('s_barrier')
            stamp('g0', 'a')
            for f in zipitems(wreads(0), xreads(0)): f()
            e.wait(lg=('x', 0))
            for f in x_dma(2) + w_dma(3): f()
        else:
            e('s_lshl_b32 s%d, s%d, 14\ns_add_u32 s%d, s%d, 0x%x' % (sB[2], sTile, sB[2], sB[2], X2F))
            for ks in range(LOOK):
                for f in xload(ks): f()
            e('s_lshl_b32 s4, s%d, 10\ns_add_u32 s4, s4, 0x%x' % (sTile, ST2))
            ld(stt, vL16, SWS, 4, 0, 'st')
            ld(stt + 4, vL16, SWS, 4, 1024, 'st')
            e('s_lshl_b32 s4, s%d, 15\ns_add_u32 s4, s4, 0x%x' % (sTeam, HALO))
            e('s_add_u32 s%d, s4, 16384' % sB[0])
            e('s_lshl_b32 s5, s%d, 12\ns_add_u32 s4, s4, s5' % sW)
            e('s_cmp_eq_u32 s%d, 0\ns_cselect_b32 s%d, 0x%x, s4\ns_cselect_b32 s%d, 0x%x, s%d' % (sTeam, sB[3], OOB, sB[0], OOB, sB[0]))
            e('v_add_u32 v%d, 0x%x, v%d' % (vHr, R + 4096, vL16))
            for f in wreads(0): f()
        stamp('p1start')

        for ks in range(16):
            stamp('k%d' % ks, 'a' if first else 'b')
            pre = []; fill = []
            if first and ks % 4 == 3 and ks < 15:
                G = ks // 4 + 1
                e.wait(vm=[('W', G), ('X', G)])
                e('s_barrier')
                if G == 1:
                    La = lab('La')
                    e('s_cmp_lg_u32 s%d, 0' % sW)
                    e('s_cbranch_scc1 ' + La)
                    e('s_getreg_b32 s4, hwreg(HW_REG_XCC_ID, 0, 4)')
                    e('s_mul_i32 s5, s4, s4\ns_lshl_b32 s5, s5, 16\ns_lshl_b32 s4, s4, 8\ns_add_u32 s4, s4, s5\ns_add_u32 s4, s4, 1')
                    e('v_mov_b32 v%d, s4' % x0)
                    e('s_lshl_b32 s4, s%d, 4' % sTeam)
                    e('s_mov_b64 exec, 1')
                    e('buffer_atomic_add v%d, off, %s, s4 sc1' % (x0, SDBG), None, False)
                    e('s_mov_b64 exec, -1')
                    e.label(La)
                fill = zipitems(wreads(ks + 1), xreads(G))
            elif ks < 15:
                fill = wreads(ks + 1)
            if first and ks == 4:
                e.wait(lg=('x', 1))
                fill = zipitems(fill, x_dma(3))
            if first and ks == 8:
                e.wait(lg=('x', 2))
                fill = zipitems(fill, halo_dma())
            if first and ks == 9:
                e('v_lshlrev_b32 v%d, 4, v%d' % (x2, vT))
                e('buffer_load_dword v%d, v%d, %s, 0 offen sc1' % (x1, x2, SDBG), 'gp')
            if first and ks == 12:
                Lg, Lh = lab('Lg'), lab('Lh')
                e.wait(vm='gp')
                e.label(Lg)
                e('v_and_b32 v%d, 0xff, v%d' % (x0, x1))
                e('v_cmp_ne_u32 vcc, 16, v%d' % x0)
                e('s_cbranch_vccz ' + Lh)
                e('buffer_load_dword v%d, v%d, %s, 0 offen sc1' % (x1, x2, SDBG), None, False)
                e('s_waitcnt vmcnt(0)')
                spin_guard(Lg)
                e.label(Lh)
                e('v_readlane_b32 s6, v%d, s%d' % (x1, sTeam))
                e('s_getreg_b32 s4, hwreg(HW_REG_XCC_ID, 0, 4)')
                e('s_mul_i32 s5, s4, s4\ns_lshl_b32 s5, s5, 16\ns_lshl_b32 s4, s4, 8\ns_add_u32 s4, s4, s5\ns_add_u32 s4, s4, 1\ns_lshl_b32 s4, s4, 4')
                if cfg.force_slow: e('s_mov_b32 s4, 0')
                e('s_cmp_eq_u32 s4, s6')
                e('s_cbranch_scc0 L_fork_s')
                e.label('L_fork' + sfx)
                e('s_lshl_b32 s4, s%d, 10\ns_add_u32 s4, s4, 0x%x' % (sTile, ST0))
                ld(stt, vL16, SWS, 4, 0, 'st')
                ld(stt + 4, vL16, SWS, 4, 1024, 'st')
                e('s_lshl_b32 s4, s%d, 13\ns_add_u32 s4, s4, 0x%x' % (sTeam, ST0 - 1024))
                e('s_cmp_eq_u32 s%d, 0\ns_cselect_b32 s4, 0x%x, s4' % (sTeam, OOB))
                ld(stt + 8, vL16, SWS, 4, 0, 'sth')
                e('s_lshl_b32 s%d, s%d, 16\ns_lshl_b32 s4, s%d, 14\ns_add_u32 s%d, s%d, s4' % (sB[0], sCs, sW, sB[0], sB[0]))
                soff_reset()
            if first and ks >= 12:
                j = ks - 12
                fill = zipitems(fill, [lambda c=c: ld(16 * j + 4 * c, vL16, SWS, sB[0], WOT + j * 4096 + c * 1024, 'wo', kind='a') for c in range(4)])
            if not first:
                if ks + LOOK < 16: fill = zipitems(fill, xload(ks + LOOK))
                if ks == 5:
                    e('s_add_u32 s4, s%d, 128' % sFlag)
                    e('v_and_b32 v%d, 28, v%d' % (x2, vPoll))
                    e('buffer_load_dword v%d, v%d, %s, s4 offen sc1' % (x1, x2, SWS), 'hp')
                if ks == 4:
                    e.wait(vm='st')
                    fill = zipitems(fill, stats_items(stt, mr))
                if ks == 6:
                    fill = zipitems(fill, stats_items(stt + 4, mr + 2))
                if ks == 9:
                    Lg, Lh = lab('Lg'), lab('Lh')
                    e.wait(vm='hp')
                    e('s_cmp_eq_u32 s%d, 0' % sTeam)
                    e('s_cbranch_scc1 ' + Lh)
                    e.label(Lg)
                    e('v_cmp_ne_u32 vcc, 1, v%d' % x1)
                    e('s_cbranch_vccz ' + Lh)
                    e('s_add_u32 s4, s%d, 128' % sFlag)
                    e('buffer_load_dword v%d, v%d, %s, s4 offen sc1' % (x1, x2, SWS), None, False)
                    e('s_waitcnt vmcnt(0)')
                    spin_guard(Lg)
                    e.label(Lh)
                    fill = zipitems(fill, halo_dma() + [lambda: ld(stt + 8, vL16, SWS, sB[0], 0, 'sth')])
                e.wait(vm=('X', ks))
            elif ks % 4 == 0:
                e.wait(lg=('x', ks // 4))
            main = []
            for c in range(6):
                for a in range(2):
                    def f(c=c, a=a):
                        if a == 0 and c in (0, 3): e.wait(lg=('w', ks, c + 2))
                        mfma(A(a, c), wf(ks, c), xr(ks, a), None if ks == 0 else A(a, c))
                    main.append(f)
            weave(main, fill, 0, 2 if len(fill) > 12 else 1)
        stamp('p1gemm')

        e.wait(vm=['halo', 'sth'])
        e('s_barrier')
        D = 4
        hw = lambda ks: WF + (ks % D) * 4
        hx = lambda ks: WF + 16 + (ks % D) * 4
        hq = lambda ks: WF + 32 + (ks % D) * 4

        def hreads(ks):
            base = vWh if ks < 8 else vWhH
            for h in range(2):
                e('ds_read_b64_tr_b16 %s, v%d offset:%d' % (vr(hw(ks) + 2 * h, 2), base, (ks & 7) * 6144 + h * 256), ('h', ks))
            e('ds_read_b128 %s, v%d offset:%d' % (vr(hx(ks), 4), vHr, (ks >> 2) * 8192 + (ks & 3) * 1024), ('h', ks))
            if first and ks < 8:
                for h in range(2):
                    e('ds_read_b64_tr_b16 %s, v%d offset:%d' % (vr(hq(ks) + 2 * h, 2), vWq, ks * 6144 + h * 256), ('h', ks))
        sti = stats_items(stt + 8, mr + 4)
        if first: sti = zipitems(stats_items(stt, mr), stats_items(stt + 4, mr + 2), sti)
        for ks in range(D - 1): hreads(ks)
        for ks in range(16):
            e.wait(lg=('h', ks))
            mfma(hacc, hw(ks), hx(ks), None if ks == 0 else hacc)
            if first:
                mfma(cacc, hw(ks), vOnes, None if ks == 0 else cacc)
                if ks < 8: mfma(cacc + 4, hq(ks), vOnes, None if ks == 0 else cacc + 4)
            if ks + D - 1 < 16: hreads(ks + D - 1)
            for _ in range(3 if first else 1):
                if sti: sti.pop(0)()
        for f in sti: f()
        if first:
            e('s_lshl_b32 s4, s%d, 6' % sW)
            e('v_add_u32 v%d, s4, v%d' % (x0, vCsA))
            e('s_lshr_b32 s4, s%d, 1\ns_mul_i32 s4, s4, 6\ns_and_b32 s5, s%d, 1\ns_add_u32 s4, s4, s5\ns_lshl_b32 s4, s4, 6' % (sW, sW))
            e('v_add_u32 v%d, s4, v%d' % (x2, vCsA))
            e('s_mov_b32 exec_lo, 0x00010001\ns_mov_b32 exec_hi, 0x00010001')
            e('ds_write_b128 v%d, %s offset:128' % (x0, vr(cacc, 4)))
            e('ds_write_b128 v%d, %s' % (x2, vr(cacc + 4, 4)))
            e('s_mov_b64 exec, -1')
            e.wait(lg='all')
        e('s_barrier')
        e('s_lshl_b32 s%d, s%d, 15\ns_lshl_b32 s4, s%d, 10\ns_add_u32 s%d, s%d, s4\ns_add_u32 s%d, s%d, 0x%x' % (sW1g, sU0, sW, sW1g, sW1g, sW1g, sW1g, W1T))
        e('s_lshr_b32 s4, s%d, 1\ns_mul_i32 s4, s4, 6144\ns_and_b32 s5, s%d, 1\ns_lshl_b32 s5, s5, 10\ns_add_u32 s%d, s4, s5' % (sW, sW, sW1l))
        soff_reset()
        cs = WF
        hcs = WF + 32
        for j in (2, 3, 4, 5, 0, 1, 6, 7):
            e('ds_read_b128 %s, v%d offset:%d' % (vr(cs + 4 * j, 4), vCsA, j * 64), ('cs', j))
        e('s_lshl_b32 s4, s%d, 6' % sW)
        e('v_add_u32 v%d, s4, v%d' % (x0, vCsA))
        e('ds_read_b128 %s, v%d offset:128' % (vr(hcs, 4), x0), 'hcs')
        dm = w1_issue(list(range(4 if first else 16)), first, 'w1a')
        kq = XR
        qq = XR + 8
        vv = XR + 16
        hh_ = XR + 24
        kp = XR + 26
        vt = XR + 30
        e.wait(lg=('cs', 5))
        it = []
        for a in range(2):
            for b in range(2):
                it += ln_tile(A(a, 4 + b), cs + 4 * (4 + b), mr + 2 * a, vv + 4 * a + 2 * b)
                it.append(lambda a=a, b=b: e('ds_write_b64 v%d, %s offset:%d' % (vVw, vr(vv + 4 * a + 2 * b, 2), a * 1024 + b * 512)))
        e('s_lshl_b32 s4, s%d, 10\ns_add_u32 s4, s4, 0x%x' % (sW, KIMG))
        e('v_add_u32 v%d, s4, v%d' % (x3, vL8))
        for b in range(2):
            it += ln_tile(A(1, 2 + b), cs + 4 * (2 + b), mr + 2, kq + 4 + 2 * b)
            it.append(lambda b=b: e('ds_write_b64 v%d, %s offset:%d' % (x3, vr(kq + 4 + 2 * b, 2), 1024 + b * 512)))
        it.append(lambda: e.wait(lg='hcs'))
        it += ln_tile(hacc, hcs, mr + 4, hh_)
        it.append(lambda: e('ds_write_b64 v%d, %s' % (vHw, vr(hh_, 2))))
        weave(it, dm, 0, 1)
        for b in range(2):
            for f in ln_tile(A(0, 2 + b), cs + 4 * (2 + b), mr, kq + 2 * b): f()
        e.wait(lg='all')
        e('s_barrier')
        e('s_lshl_b32 s4, s%d, 11\ns_add_u32 s4, s4, 0x%x' % (sW, VIMG))
        e('v_add_u32 v%d, s4, v%d' % (x2, vL8))
        for b in range(2):
            e('ds_read_b64 %s, v%d offset:%d' % (vr(kp + 2 * b, 2), x3, b * 512), 'kp')
        for b in range(2):
            for i in range(3):
                e('ds_read_b64_tr_b16 %s, v%d offset:%d' % (vr(vt + 6 * b + 2 * i, 2), x2, i * 1024 + b * 512), 'vt')
        for b in range(2):
            for h in range(2):
                e('v_pk_add_f32 %s, %s, %s' % (vr(cs + 4 * b + 2 * h, 2), vr(cs + 4 * b + 2 * h, 2), vr(cs + 24 + 4 * b + 2 * h, 2)))
        for a in range(2):
            for b in range(2):
                for f in ln_tile(A(a, b), cs + 4 * b, mr + 2 * a, qq + 4 * a + 2 * b, scale=False): f()
        for a in range(2):
            e('v_mul_f32 v%d, 0x3eb8aa3b, v%d' % (mr + 2 * a + 1, mr + 2 * a + 1))
        e.wait(lg='kp')
        prs = [(a, b) for a in range(2) for b in range(2)]
        Sp = lambda i: acc + 8 * i
        Sc = lambda i: acc + 8 * i + 4
        for i, (a, b) in enumerate(prs):
            kprev = kp + 2 * b if a == 0 else kq + 2 * b
            e('v_mfma_f32_16x16x16_bf16 %s, %s, %s, %s' % (vr(Sp(i), 4), vr(kprev, 2), vr(qq + 4 * a + 2 * b, 2), vr(vBias, 4) if a == 0 else '0'))
            e('v_mfma_f32_16x16x16_bf16 %s, %s, %s, 0' % (vr(Sc(i), 4), vr(kq + 4 * a + 2 * b, 2), vr(qq + 4 * a + 2 * b, 2)))
        T = lambda i: WF + 8 * i
        P = lambda i: acc + 32 + 4 * i
        par = 's[%d:%d]' % (sPar, sPar + 1); c0 = 's[%d:%d]' % (sCur0, sCur0 + 1); c1 = 's[%d:%d]' % (sCur1, sCur1 + 1)
        steps = [
            lambda i, a: e('v_cndmask_b32 v%d, v%d, v%d, %s' % (T(i), Sp(i), Sp(i) + 1, par)),
            lambda i, a: e('v_cndmask_b32 v%d, v%d, v%d, %s' % (T(i) + 1, Sp(i) + 2, Sp(i) + 3, par)),
            lambda i, a: e('v_cndmask_b32 v%d, v%d, v%d, %s' % (T(i) + 2, Sc(i), Sc(i) + 1, par)),
            lambda i, a: e('v_cndmask_b32 v%d, v%d, v%d, %s' % (T(i) + 3, Sc(i) + 2, Sc(i) + 3, par)),
            lambda i, a: e('v_cndmask_b32 v%d, v%d, v%d, %s' % (T(i), T(i), T(i) + 2, c0)),
            lambda i, a: e('v_cndmask_b32 v%d, v%d, v%d, %s' % (T(i) + 1, T(i) + 1, T(i) + 3, c1)),
            lambda i, a: e('v_max_f32 v%d, v%d, v%d' % (T(i) + 2, T(i), T(i) + 1)),
            lambda i, a: e('v_mov_b32 v%d, v%d' % (T(i) + 3, T(i) + 2)),
            lambda i, a: e('v_permlane32_swap_b32 v%d, v%d' % (T(i) + 2, T(i) + 3)),
            lambda i, a: e('v_max_f32 v%d, v%d, v%d' % (T(i) + 2, T(i) + 2, T(i) + 3)),
            lambda i, a: e('v_mov_b32 v%d, v%d' % (T(i) + 3, T(i) + 2)),
            lambda i, a: e('v_permlane16_swap_b32 v%d, v%d' % (T(i) + 2, T(i) + 3)),
            lambda i, a: e('v_max_f32 v%d, v%d, v%d' % (T(i) + 2, T(i) + 2, T(i) + 3)),
            lambda i, a: e('v_sub_f32 v%d, v%d, v%d' % (T(i), T(i), T(i) + 2)),
            lambda i, a: e('v_sub_f32 v%d, v%d, v%d' % (T(i) + 1, T(i) + 1, T(i) + 2)),
            lambda i, a: e('v_pk_mul_f32 %s, %s, %s op_sel:[0,1] op_sel_hi:[1,1]' % (vr(T(i), 2), vr(T(i), 2), vr(mr + 2 * a, 2))),
            lambda i, a: e('v_exp_f32 v%d, v%d' % (T(i), T(i))),
            lambda i, a: e('v_exp_f32 v%d, v%d' % (T(i) + 1, T(i) + 1)),
            lambda i, a: e('v_cvt_pk_bf16_f32 v%d, v%d, v%d' % (T(i), T(i), T(i))),
            lambda i, a: e('v_cvt_pk_bf16_f32 v%d, v%d, v%d' % (T(i) + 1, T(i) + 1, T(i) + 1)),
            lambda i, a: e('v_and_b32 v%d, v%d, v%d' % (P(i), vMA, T(i))),
            lambda i, a: e('v_and_b32 v%d, v%d, v%d' % (P(i) + 1, vMA + 1, T(i) + 1)),
            lambda i, a: e('v_and_b32 v%d, v%d, v%d' % (P(i) + 2, vMA + 2, T(i))),
            lambda i, a: e('v_and_b32 v%d, v%d, v%d' % (P(i) + 3, vMA + 3, T(i) + 1)),
        ]
        for s_ in steps:
            for i, (a, b) in enumerate(prs): s_(i, a)
        e.wait(lg='vt')
        for i, (a, b) in enumerate(prs):
            mfma(Sc(i), vOnes, P(i), None)
            mfma(Sp(i), vt + 6 * b + 2 * a, P(i), None)
        for i in range(4): e('v_rcp_f32 v%d, v%d' % (Sc(i), Sc(i)))
        e('s_lshl_b32 s4, s%d, 14\ns_lshl_b32 s5, s%d, 10\ns_add_u32 s4, s4, s5\ns_add_u32 s4, s4, 0x%x\ns_add_u32 s5, s4, 16384' % (sTile, sM, OF))
        for i, (a, b) in enumerate(prs):
            for h in range(2):
                e('v_pk_mul_f32 %s, %s, %s op_sel:[0,0] op_sel_hi:[1,0]' % (vr(Sp(i) + 2 * h, 2), vr(Sp(i) + 2 * h, 2), vr(Sc(i), 2)))
            for h in range(2):
                e('v_cvt_pk_bf16_f32 v%d, v%d, v%d' % (XR + 2 * i + h, Sp(i) + 2 * h, Sp(i) + 2 * h + 1))
            if b == 1: st(XR + 4 * a, vL16, SWS, 4 + a, 0, 'o', AUX)
        stamp('p1end')
        for r_, n_ in ((acc, 48), (hacc, 4), (WF, 48), (XR, 64), (stt, 12), (mr, 6)): V.put(r_, n_)
        if first: V.put(cacc, 8)

    def PK(nks, abase, src, tstride, dstf, dsts, last, halo, extra=None):
        NR = 16
        XR = V.get(4 * NR); acc = V.get(32); rd = V.get(16); pk = V.get(8); sq = V.get(4)
        soff_reset()
        order = [(a, s) for a in (3, 2, 1, 0) for s in range(nks)]
        e('s_mul_i32 s4, s%d, %d\ns_add_u32 s4, s4, 0x%x' % (sW, nks * 1024, src))
        for a in range(4):
            e('s_xor_b32 s5, s%d, %d\ns_add_u32 s5, s5, s%d\ns_mul_i32 s5, s5, %d\ns_add_u32 s%d, s5, s4' % (sW, a, sOwn, tstride, sB[a]))

        def load(i):
            a, s = order[i]
            if nks == 11 and s == 10:
                e('s_add_u32 s4, s%d, 10240\ns_cmp_eq_u32 s%d, 3\ns_cselect_b32 s4, 0x%x, s4' % (sB[a], sW, OOB))
                ld(XR + 4 * (i % NR), vL16, SWS, 4, 0, ('x', i))
            else:
                ld(XR + 4 * (i % NR), vL16, SWS, sB[a], s * 1024, ('x', i))
        LOOK = 12
        for i in range(min(LOOK, len(order))): load(i)
        ac = lambda a, c: acc + (a & 1) * 16 + 4 * c
        pend = []
        for i, (a, s) in enumerate(order):
            e.wait(vm=('x', i))
            if s == 0 and a < 3:
                p = a + 1
                bo = 16384 if p == 2 else 0
                pend = [None, None]
                pend += [lambda c=c, p=p, bo=bo: e('ds_write_b128 v%d, %s offset:%d' % (vRedW + p - 1, vr(ac(p, c), 4), bo + c * 1024), 'rw') for c in range(4)]
                pend += [None] * (6 if nks > 4 else 2)
                pend += [lambda: (e.wait(lg='all'), e('s_barrier'))]
                pend += [lambda c=c, bo=bo: e('ds_read_b128 %s, v%d offset:%d' % (vr(rd + 4 * c, 4), vRedR, bo + c * 1024), 'rr') for c in range(4)]
                pend += [None] * (4 if nks > 4 else 0)
                pend += [lambda: e.wait(lg='rr')]
                pend += [lambda j=j: e('v_pk_add_f32 %s, %s, %s' % (vr(vRes + 2 * j, 2), vr(vRes + 2 * j, 2), vr(rd + 2 * j, 2))) for j in range(8)]
            for c in range(4):
                mfma(ac(a, c), abase + 16 * s + 4 * c, XR + 4 * (i % NR), None if s == 0 else ac(a, c), 'a')
                if pend:
                    f = pend.pop(0)
                    if f: f()
            if i + LOOK < len(order): load(i + LOOK)
            if s == nks - 1:
                for f in pend:
                    if f: f()
                pend = []
        stamp('gemm')
        if extra: extra()
        if last:
            e('s_add_u32 s4, s%d, s%d\ns_lshl_b32 s4, s4, 14\ns_lshl_b32 s5, s%d, 7\ns_add_u32 s4, s4, s5' % (sOwn, sW, sCs))
            e('v_lshlrev_b32 v%d, 10, v%d' % (x0, vT))
            e('v_lshl_add_u32 v%d, v%d, 4, v%d' % (x0, vG, x0))
        else:
            e('s_add_u32 s6, s%d, s%d\ns_lshl_b32 s4, s6, 14\ns_lshl_b32 s5, s%d, 11\ns_add_u32 s4, s4, s5\ns_add_u32 s4, s4, 0x%x' % (sOwn, sW, sCs, dstf))
            e('s_lshl_b32 s6, s6, 10\ns_add_u32 s6, s6, 0x%x' % dsts)
        for u in range(2):
            for j in range(4 * u, 4 * u + 4):
                e('v_pk_add_f32 %s, %s, %s' % (vr(vRes + 2 * j, 2), vr(vRes + 2 * j, 2), vr(acc + 2 * j, 2)))
            for j in range(4 * u, 4 * u + 4):
                e('v_cvt_pk_bf16_f32 v%d, v%d, v%d' % (pk + j, vRes + 2 * j, vRes + 2 * j + 1))
            if last: st(pk + 4 * u, x0, SOUT, 4, 64 * u, 'o', '')
            else: st(pk + 4 * u, vL16, SWS, 4, 1024 * u, 'o', AUX)
        if not last:
            e('v_pk_add_f32 %s, %s, %s' % (vr(sq, 2), vr(vRes, 2), vr(vRes + 2, 2)))
            e('v_pk_mul_f32 %s, %s, %s' % (vr(sq + 2, 2), vr(vRes, 2), vr(vRes, 2)))
            e('v_pk_fma_f32 %s, %s, %s, %s' % (vr(sq + 2, 2), vr(vRes + 2, 2), vr(vRes + 2, 2), vr(sq + 2, 2)))
            for j in range(2, 8):
                e('v_pk_add_f32 %s, %s, %s' % (vr(sq, 2), vr(sq, 2), vr(vRes + 2 * j, 2)))
                e('v_pk_fma_f32 %s, %s, %s, %s' % (vr(sq + 2, 2), vr(vRes + 2 * j, 2), vr(vRes + 2 * j, 2), vr(sq + 2, 2)))
            e('v_add_f32 v%d, v%d, v%d' % (sq, sq, sq + 1))
            e('v_add_f32 v%d, v%d, v%d' % (sq + 1, sq + 2, sq + 3))
            e('v_permlane32_swap_b32 v%d, v%d' % (sq, sq + 1))
            e('v_add_f32 v%d, v%d, v%d' % (sq, sq, sq + 1))
            e('v_mov_b32 v%d, v%d' % (sq + 1, sq))
            e('v_permlane16_swap_b32 v%d, v%d' % (sq, sq + 1))
            e('v_add_f32 v%d, v%d, v%d' % (sq, sq, sq + 1))
            e('s_mov_b32 exec_lo, 0xffff\ns_mov_b32 exec_hi, 0xffff')
            st(sq, vStA, SWS, 6, 0, 'o', AUX, n=1)
            e('s_mov_b64 exec, -1')
            if halo:
                Lh = lab('Lhl')
                e('s_cmp_lg_u32 s%d, 3\ns_cbranch_scc1 %s' % (sW, Lh))
                e('s_cmp_lt_u32 s%d, 8\ns_cbranch_scc1 %s' % (sM, Lh))
                e('s_add_u32 s6, s%d, 1\ns_lshl_b32 s6, s6, 15\ns_add_u32 s6, s6, 0x%x\ns_add_u32 s4, s6, s5\ns_add_u32 s6, s6, 16384' % (sTeam, HALO))
                st(pk, vL16, SWS, 4, 0, None, ' sc0 sc1', track=False)
                st(pk + 4, vL16, SWS, 4, 1024, None, ' sc0 sc1', track=False)
                e('s_mov_b32 exec_lo, 0xffff\ns_mov_b32 exec_hi, 0xffff')
                st(sq, vStA, SWS, 6, 0, None, ' sc0 sc1', n=1, track=False)
                e('s_waitcnt vmcnt(0)')
                e('v_mov_b32 v%d, 1' % x0)
                e('s_lshl_b32 s4, s%d, 2\ns_add_u32 s4, s4, s%d\ns_add_u32 s4, s4, %d' % (sCs, sFlag, 256 + 128))
                e('s_mov_b64 exec, 1')
                e('buffer_store_dword v%d, off, %s, s4 sc0 sc1' % (x0, SWS), None, False)
                e('s_mov_b64 exec, -1')
                e.label(Lh)
        stamp('end')
        for r_, n_ in ((XR, 4 * NR), (acc, 32), (rd, 16), (pk, 8), (sq, 4)): V.put(r_, n_)

    def P3(first):
        acc = V.get(48); WF = V.get(48); XR = V.get(64); stt = V.get(8); mr = V.get(4)
        wb = V.get(2)
        if first: cacc = V.get(8); cw = V.get(8); cb = V.get(2)
        A = lambda a, c: acc + (a * 6 + c) * 4
        wf = lambda ks, c: WF + ((ks & 1) * 6 + c) * 4
        xr = lambda ks, a: XR + ((ks % 8) * 2 + a) * 4
        soff_reset()
        LOOK = 5
        e('s_lshl_b32 s%d, s%d, 14\ns_add_u32 s%d, s%d, 0x%x' % (sB[2], sTile, sB[2], sB[2], X1F))

        def xload(ks):
            return [lambda a=a: ld(xr(ks, a), vL16, SWS, sB[2], a * 16384 + ks * 1024, ('X', ks)) for a in range(2)]
        for ks in range(LOOK):
            for f in xload(ks): f()
        e('s_lshl_b32 s4, s%d, 10\ns_add_u32 s4, s4, 0x%x' % (sTile, ST1))
        ld(stt, vL16, SWS, 4, 0, 'st')
        ld(stt + 4, vL16, SWS, 4, 1024, 'st')
        if first:
            e('v_add_u32 v%d, 0x%x, v%d' % (wb, SLOT0, vL16))
            e('s_lshl_b32 s4, s%d, 10\ns_add_u32 s4, s4, 2048' % sW)
            e('v_add_u32 v%d, s4, v%d' % (cb, wb))
            e('v_add_u32 v%d, s%d, v%d' % (cb + 1, sW1l, wb))
            e('s_mul_i32 s%d, s%d, 43\ns_mul_i32 s4, s%d, 11\ns_add_u32 s%d, s%d, s4\ns_lshl_b32 s%d, s%d, 12\ns_add_u32 s%d, s%d, 0x%x' % (sB[0], sCs, sW, sB[0], sB[0], sB[0], sB[0], sB[0], sB[0], W2T))
            e('s_add_u32 s4, s%d, 40960\ns_cmp_eq_u32 s%d, 3\ns_cselect_b32 s%d, 0x%x, s4' % (sB[0], sW, sB[1], OOB))
        else:
            e('v_add_u32 v%d, 49152, v%d' % (wb + 1, vL16))

        def waddr(ks):
            if first: return wb, (ks % 10) * 6144
            return (vL16, ks * 6144) if ks < 8 else (wb + 1, (ks - 8) * 6144)

        def wreads(ks):
            out = []
            b, o = waddr(ks)
            for c in range(6):
                out.append(lambda c=c: e('ds_read_b128 %s, v%d offset:%d' % (vr(wf(ks, c), 4), b, o + c * 1024), ('w', ks, c)))
            return out

        def creads(ks):
            o = (ks % 10) * 6144
            out = [lambda: e('ds_read_b128 %s, v%d offset:%d' % (vr(cw, 4), cb, o), ('c', ks))]
            if ks & 1: out.append(lambda: e('ds_read_b128 %s, v%d offset:%d' % (vr(cw + 4, 4), cb + 1, o - 6144), ('c', ks)))
            return out

        def w2load(s):
            out = []
            for c in range(4):
                if s < 10: out.append(lambda c=c: ld(64 + 16 * s + 4 * c, vL16, SWS, sB[0], s * 4096 + c * 1024, 'w2', kind='a'))
                else: out.append(lambda c=c: ld(64 + 16 * s + 4 * c, vL16, SWS, sB[1], c * 1024, 'w2', kind='a'))
            return out
        e.wait(vm=['w1a', 'w1b'])
        e('s_barrier')
        for f in wreads(0): f()
        for ks in range(16):
            fill = []
            if first and ks in (4, 6):
                e.wait(lg='all')
                e('s_barrier')
                fill += w1_issue([10, 11, 12, 13] if ks == 4 else [14, 15], True, 'w1c')
            if first and ks == 9:
                e.wait(vm='w1c')
                e('s_barrier')
            if first: fill = creads(ks) + fill
            if ks < 15: fill = zipitems(wreads(ks + 1), fill)
            if ks + LOOK < 16: fill = zipitems(fill, xload(ks + LOOK))
            if first and ks >= 11:
                fill = zipitems(fill, w2load(2 * (ks - 11)) + w2load(2 * (ks - 11) + 1))
            if ks == 2:
                e.wait(vm='st')
                fill = zipitems(fill, stats_items(stt, mr))
            if ks == 3: fill = zipitems(fill, stats_items(stt + 4, mr + 2))
            e.wait(vm=('X', ks))
            main = []
            for c in range(6):
                for a in range(2):
                    def f(c=c, a=a):
                        if a == 0 and c in (0, 3): e.wait(lg=('w', ks, c + 2))
                        mfma(A(a, c), wf(ks, c), xr(ks, a), None if ks == 0 else A(a, c))
                    main.append(f)
            weave(main, fill, 0, 2 if len(fill) > 12 else 1)
            if first:
                e.wait(lg=('c', ks))
                mfma(cacc, cw, vOnes, None if ks == 0 else cacc)
                if ks & 1: mfma(cacc + 4, cw + 4, vOnes, None if ks == 1 else cacc + 4)
        stamp('p3gemm')
        if first:
            for f in w2load(10): f()
            e('s_lshl_b32 s4, s%d, 6' % sW)
            e('v_add_u32 v%d, s4, v%d' % (x0, vCsA))
            e('s_lshr_b32 s4, s%d, 1\ns_mul_i32 s4, s4, 6\ns_and_b32 s5, s%d, 1\ns_add_u32 s4, s4, s5\ns_lshl_b32 s4, s4, 6' % (sW, sW))
            e('v_add_u32 v%d, s4, v%d' % (x2, vCsA))
            e('s_mov_b32 exec_lo, 0x00010001\ns_mov_b32 exec_hi, 0x00010001')
            e('ds_write_b128 v%d, %s offset:%d' % (x0, vr(cacc, 4), 512 + 128))
            e('ds_write_b128 v%d, %s offset:512' % (x2, vr(cacc + 4, 4)))
            e('s_mov_b64 exec, -1')
            e.wait(lg='all')
            e('s_barrier')
        cs = WF
        for j in (2, 3, 4, 5, 0, 1, 6, 7):
            e('ds_read_b128 %s, v%d offset:%d' % (vr(cs + 4 * j, 4), vCsA, 512 + j * 64), ('cs', j))
        e('s_mul_i32 s4, s%d, 43\ns_add_u32 s4, s4, s%d\ns_lshl_b32 s4, s4, 10\ns_add_u32 s4, s4, 0x%x\ns_add_u32 s5, s4, %d' % (sTile, sU0, HF, 43 * 1024))
        e('s_cmp_lt_u32 s%d, 11\ns_cselect_b32 s6, s4, 0x%x\ns_cselect_b32 s7, s5, 0x%x' % (sM, OOB, OOB))
        for j in (1, 2, 0):
            e.wait(lg=('cs', 7 if j == 0 else 2 * j + 1))
            if j == 0:
                for b in range(2):
                    for h in range(2):
                        e('v_pk_add_f32 %s, %s, %s' % (vr(cs + 4 * b + 2 * h, 2), vr(cs + 4 * b + 2 * h, 2), vr(cs + 24 + 4 * b + 2 * h, 2)))
            for a in range(2):
                o = XR + (a * 3 + j) * 4
                for f in zipitems(ln_tile(A(a, 2 * j), cs + 8 * j, mr + 2 * a, o, relu=True), ln_tile(A(a, 2 * j + 1), cs + 8 * j + 4, mr + 2 * a, o + 2, relu=True)): f()
                st(o, vL16, SWS, (6 if j == 2 else 4) + a, j * 1024, 'o', AUX)
        stamp('p3end')
        for r_, n_ in ((acc, 48), (WF, 48), (XR, 64), (stt, 8), (mr, 4), (wb, 2)): V.put(r_, n_)
        if first: V.put(cacc, 8); V.put(cw, 8); V.put(cb, 2)

    def stop(name):
        if cfg.stop == name:
            e('s_branch L_end' + sfx)

    def p2_extra():
        e('s_barrier')
        soff_reset()
        for f in w1_issue([4, 5, 6, 7, 8, 9], True, 'w1b'): f()

    P1(True); stop('p1')
    team_sync(1, 'o')
    PK(4, 0, OF, 16384, X1F, ST1, False, False, extra=p2_extra); stop('p2')
    team_sync(2, 'o')
    P3(True); stop('p3')
    team_sync(3, 'o')
    PK(11, 64, HF, 43 * 1024, X2F, ST2, False, True); stop('p4')
    team_sync(4, 'o')
    P1(False); stop('p1b')
    team_sync(5, 'o')
    PK(4, 0, OF, 16384, X1F, ST1, False, False); stop('p2b')
    team_sync(6, 'o')
    P3(False); stop('p3b')
    team_sync(7, 'o')
    PK(11, 64, HF, 43 * 1024, None, None, True, False)
    e.label('L_end' + sfx)
    if cfg.stamps:
        e('s_waitcnt vmcnt(0) lgkmcnt(0)')
        e('s_mov_b64 exec, -1')
        e('s_memtime s[4:5]\ns_memrealtime s[6:7]\ns_waitcnt lgkmcnt(0)')
        flush_stamps()
        e('v_writelane_b32 v255, s4, 62\nv_writelane_b32 v255, s6, 63')
        e('v_and_b32 v2, 63, v0\nv_lshlrev_b32 v2, 2, v2')
        e('s_lshl_b32 s4, s2, 2\ns_add_u32 s4, s4, s%d\ns_lshl_b32 s4, s4, 8\ns_add_u32 s4, s4, 0x%x' % (sW, STAMPS))
        e('buffer_store_dword v255, v2, %s, s4 offen' % SWS)
    if mode == 'f': e.label('L_exit')
    e('s_endpgm')
    return e, V.maxused, stamp_names


HEADER = open('interleave_layers__sliding_local_dilated__dense_activation_relu__prompt.s.ref').read().split('; Override')[0]


def generate(cfg):
    ef, vmax, names = build('f', cfg)
    es, _, _ = build('s', cfg)
    fast = ef.text(); slow = es.text()
    slow = slow[slow.index('L_fork_s:'):]
    s = HEADER
    s += '; @launch grid=(256,1,1) block=(256,1,1) lds=%d\n' % LDS_BYTES
    s += '.amdgcn_target "amdgcn-amd-amdhsa--gfx950"\n.text\n'
    s += '.globl %s\n.p2align 8\n.type %s,@function\n%s:\n' % (NAME, NAME, NAME)
    s += fast + 'L_fast_end:\n' + slow
    s += '.section .rodata,"a"\n.p2align 6\n.amdhsa_kernel %s\n' % NAME
    s += '  .amdhsa_next_free_vgpr 512\n  .amdhsa_next_free_sgpr 102\n  .amdhsa_accum_offset 256\n'
    s += '  .amdhsa_group_segment_fixed_size 0\n  .amdhsa_kernarg_size 72\n  .amdhsa_user_sgpr_count 2\n'
    s += '  .amdhsa_user_sgpr_kernarg_segment_ptr 1\n  .amdhsa_system_sgpr_workgroup_id_x 1\n'
    s += '  .amdhsa_float_denorm_mode_32 3\n.end_amdhsa_kernel\n'
    import subprocess, tempfile, os
    d = tempfile.mkdtemp()
    open(d + '/a.s', 'w').write(s.replace('CODE_BYTES', '0x12345'))
    subprocess.check_call(['clang', '-x', 'assembler', '-target', 'amdgcn-amd-amdhsa', '-mcpu=gfx950', '-c', d + '/a.s', '-o', d + '/a.o'])
    sy = subprocess.check_output(['llvm-readelf', '-s', d + '/a.o']).decode()
    size = [int(l.split()[1], 16) for l in sy.split('\n') if l.endswith(' L_fast_end')][0]
    s = s.replace('CODE_BYTES', '0x%x' % (size & ~127))
    return s, dict(vmax=vmax, nins=ef.nins, nops=ef.nops, stamps=names, size=size)


if __name__ == '__main__':
    cfg = Cfg()
    out = sys.argv[1]
    for a in sys.argv[2:]:
        k, v = a.split('=')
        setattr(cfg, k, {'1': True, '0': False}.get(v, v))
    s, info = generate(cfg)
    open(out, 'w').write(s)
    print(info)
```

```python
import sys, re
import gen
def variant(s, order):
    main = '; @launch kernel=%s grid=(256,1,1) block=(256,1,1) lds=163840\n' % gen.NAME
    emp = '; @launch kernel=empty_kernel grid=(1,1,1) block=(64,1,1) lds=0\n'
    lines = ''.join(main if c == 'M' else emp for c in order)
    s = re.sub(r'; @launch grid=.*\n', lambda m: lines, s)
    if 'E' in order:
        s = s.replace('.section .rodata,"a"', '.globl empty_kernel\n.p2align 8\n.type empty_kernel,@function\nempty_kernel:\n    s_endpgm\n.section .rodata,"a"')
        s += '.p2align 6\n.amdhsa_kernel empty_kernel\n  .amdhsa_next_free_vgpr 8\n  .amdhsa_next_free_sgpr 16\n  .amdhsa_accum_offset 8\n  .amdhsa_group_segment_fixed_size 0\n  .amdhsa_kernarg_size 72\n  .amdhsa_user_sgpr_count 2\n  .amdhsa_user_sgpr_kernarg_segment_ptr 1\n  .amdhsa_system_sgpr_workgroup_id_x 1\n.end_amdhsa_kernel\n'
    return s
if __name__ == '__main__':
    s, info = gen.generate(gen.Cfg())
    for o in sys.argv[1:]:
        open('list_%s.s' % o, 'w').write(variant(s, o))
```

```python
import sys
from em import *

NAME = 'interleave_layers__sliding_local_dilated__dense_activation_relu__prompt_kernel'

WOT = 0x000000; W2T = 0x080000; W1T = 0x200000
OF = 0x400000; X1F = 0x600000; X2F = 0x800000; HF = 0xA00000
ST0 = 0x1000000; ST1 = 0x1020000; ST2 = 0x1040000
HALO = 0x1080000; FLAGS = 0x1110000; STAMPS = 0x1200000; WS_SIZE = 0x1400000
OOB = 0x80000000
R = 98304
CSQ = R; CS1 = R + 512
SLOT0 = R + 2048
R2 = R + 32768
VIMG = R2; KIMG = R2 + 9216
LDS_BYTES = 163840
SPIN = 1 << 20


class Cfg:
    stamps = False
    stop = None
    force_slow = False
    fine = None


def build(mode, cfg):
    e = Em()
    sfx = '_' + mode
    AUX = '' if mode == 'f' else ' sc0 sc1'
    V = Alloc('v', 1, 256)
    S = Alloc('s', 48, 78)
    lab = lambda p: e.newlabel(p + sfx)
    SX, SWQ, SPP, SWS, SOUT, SDBG = 's[24:27]', 's[28:31]', 's[32:35]', 's[36:39]', 's[40:43]', 's[44:47]'
    stamp_names = []

    pend_st = []
    if cfg.stamps: V.free[255] = False

    def stamp(name, grp=None):
        if cfg.stamps and (grp is None or grp == cfg.fine):
            if len(pend_st) == 11: flush_stamps()
            i = len(pend_st)
            assert len(stamp_names) < 61
            pend_st.append(len(stamp_names))
            stamp_names.append(name)
            e('s_memtime s[%d:%d]' % (80 + 2 * i, 81 + 2 * i))

    def flush_stamps():
        if cfg.stamps and pend_st:
            e('s_waitcnt lgkmcnt(0)')
            for i, j in enumerate(pend_st): e('v_writelane_b32 v255, s%d, %d' % (80 + 2 * i, j))
            pend_st.clear()

    sW, sTeam, sM = 48, 49, 50
    for x in (48, 49, 50): S.free[x] = False
    sFlag = S.get(); sTile = S.get(); sCs = S.get(); sOwn = S.get(); sU0 = S.get()
    sPar = S.get(2); sCur0 = S.get(2); sCur1 = S.get(2)
    t0, t1, t2, t3, t4, t5 = 4, 5, 6, 7, 8, 9
    sB = [10, 11, 12, 13]
    sSpin = 14
    sOffC = [16, 17, 18]
    sPP = [20, 21, 22, 23]
    offc = {'held': [None] * 3, 'n': 0}

    def soff(base, off):
        hi = off & ~4095; lo = off & 4095
        if hi == 0: return base, lo
        key = (base, hi)
        if key in offc['held']: return sOffC[offc['held'].index(key)], lo
        i = offc['n'] % 3; offc['n'] += 1
        offc['held'][i] = key
        e('s_add_u32 s%d, s%d, 0x%x' % (sOffC[i], base, hi))
        return sOffC[i], lo

    def soff_reset(): offc['held'] = [None] * 3

    def imm(o): return ' offset:%d' % o if o else ''

    def ld(dst, vaddr, srd, base, off, tag, aux=' sc1', n=4, kind='v'):
        s, o = soff(base, off)
        d = vr(dst, n) if kind == 'v' else ar(dst, n)
        e('buffer_load_dword%s %s, v%d, %s, s%d offen%s%s' % ('x%d' % n if n > 1 else '', d, vaddr, srd, s, imm(o), aux), tag)

    def st(src, vaddr, srd, base, off, tag, aux, n=4, track=True):
        s, o = soff(base, off)
        e('buffer_store_dword%s %s, v%d, %s, s%d offen%s%s' % ('x%d' % n if n > 1 else '', vr(src, n), vaddr, srd, s, imm(o), aux), tag, track)

    def dma(vaddr, srd, base, off, ldsreg, ldsoff, tag, aux='', track=True):
        s, o = soff(base, off)
        lo = ldsoff - o
        if ldsreg is None:
            assert lo >= 0
            e('s_mov_b32 m0, 0x%x' % lo)
        elif lo >= 0: e('s_add_u32 m0, s%d, 0x%x' % (ldsreg, lo))
        else: e('s_sub_u32 m0, s%d, 0x%x' % (ldsreg, -lo))
        e('buffer_load_dwordx4 v%d, %s, s%d offen%s%s lds' % (vaddr, srd, s, imm(o), aux), tag, track)

    def mfma(d, a, b, c, akind='v'):
        A = vr(a, 4) if akind == 'v' else ar(a, 4)
        e('v_mfma_f32_16x16x32_bf16 %s, %s, %s, %s' % (vr(d, 4), A, vr(b, 4), '0' if c is None else vr(c, 4)))

    def weave(main, fill, start=0, per=1):
        fill = list(fill)
        for i, m in enumerate(main):
            m()
            if i >= start:
                for _ in range(per):
                    if fill: fill.pop(0)()
        for f in fill: f()

    def spin_guard(loop):
        e('s_sub_u32 s%d, s%d, 1' % (sSpin, sSpin))
        e('s_cbranch_scc1 L_end' + sfx)
        e('s_branch ' + loop)

    e('s_cmp_ge_u32 s2, 256')
    e('s_cbranch_scc1 L_exit')
    e('s_load_dwordx16 s[4:19], s[0:1], 0')
    e('s_load_dwordx2 s[20:21], s[0:1], 64')
    stamp('start')
    if cfg.stamps: e('s_memrealtime s[78:79]')
    vL = V.get(); vT = V.get(); vG = V.get(); vL16 = V.get()
    x0 = V.get(); x1 = V.get(); x2 = V.get(); x3 = V.get()
    e('v_lshrrev_b32 v%d, 6, v0' % x0)
    e('v_and_b32 v%d, 63, v0' % vL)
    e('v_readfirstlane_b32 s%d, v%d' % (sW, x0))
    e('v_and_b32 v%d, 15, v0' % vT)
    e('v_lshrrev_b32 v%d, 4, v%d' % (vG, vL))
    e('v_lshlrev_b32 v%d, 4, v%d' % (vL16, vL))
    e('s_and_b32 s%d, s2, 7' % sTeam)
    e('s_lshl_b32 s%d, s%d, 1' % (sTeam, sTeam))
    e('s_lshr_b32 s3, s2, 7')
    e('s_add_u32 s%d, s%d, s3' % (sTeam, sTeam))
    e('s_lshr_b32 s%d, s2, 3' % sM)
    e('s_and_b32 s%d, s%d, 15' % (sM, sM))
    e('s_and_b32 s%d, s%d, 7' % (sCs, sM))
    e('s_lshl_b32 s%d, s%d, 8' % (sFlag, sTeam))
    e('s_add_u32 s%d, s%d, 0x%x' % (sFlag, sFlag, FLAGS))
    e('s_lshl_b32 s%d, s%d, 3' % (sTile, sTeam))
    e('s_lshr_b32 s3, s%d, 3' % sM)
    e('s_lshl_b32 s3, s3, 2')
    e('s_add_u32 s%d, s%d, s3' % (sOwn, sTile))
    e('s_lshl_b32 s3, s%d, 1' % sW)
    e('s_add_u32 s%d, s%d, s3' % (sTile, sTile))
    e('s_mul_i32 s%d, s%d, 3' % (sU0, sM))
    e('s_lshl_b32 s3, s%d, 1' % sM)
    e('s_add_u32 s3, s3, 11')
    e('s_min_u32 s%d, s%d, s3' % (sU0, sU0))
    vWa = [V.get(), V.get()]; vWaH = [V.get(), V.get()]
    vWd = V.get(); vXd = V.get(); vXr = V.get(); vHr = V.get()
    e('v_bfe_u32 v%d, v%d, 2, 2' % (x0, vL))
    e('v_and_b32 v%d, 3, v%d' % (x1, vL))
    e('v_lshl_add_u32 v%d, v%d, 3, v%d' % (x2, vG, x0))
    e('v_lshlrev_b32 v%d, 6, v%d' % (x2, x2))
    e('v_lshl_add_u32 v%d, v%d, 3, v%d' % (x2, x1, x2))
    e('v_and_b32 v%d, 1, v%d' % (x3, vG))
    e('v_lshl_add_u32 v%d, v%d, 5, v%d' % (vWa[0], x3, x2))
    e('v_xor_b32 v%d, 32, v%d' % (vWa[1], vWa[0]))
    e('v_add_u32 v%d, 49152, v%d' % (vWaH[0], vWa[0]))
    e('v_add_u32 v%d, 49152, v%d' % (vWaH[1], vWa[1]))
    e('v_lshrrev_b32 v%d, 4, v%d' % (x2, vL))
    e('v_and_b32 v%d, 2, v%d' % (x2, x2))
    e('v_xor_b32 v%d, v%d, v%d' % (x2, x2, x1))
    e('v_lshrrev_b32 v%d, 2, v%d' % (x3, vL))
    e('v_mul_u32_u24 v%d, 3072, v%d' % (vWd, x3))
    e('v_lshl_add_u32 v%d, v%d, 4, v%d' % (vWd, x2, vWd))

    def swz(dst, src, tmp):
        e('v_lshrrev_b32 v%d, 1, v%d' % (tmp, src))
        e('v_mul_u32_u24 v%d, 3, v%d' % (tmp, tmp))
        e('v_and_b32 v%d, 1, v%d' % (dst, src))
        e('v_lshlrev_b32 v%d, 1, v%d' % (dst, dst))
        e('v_xor_b32 v%d, v%d, v%d' % (dst, dst, tmp))
    swz(x2, vG, vXd)
    e('v_xor_b32 v%d, v%d, v%d' % (x2, x2, x1))
    e('v_lshlrev_b32 v%d, 10, v%d' % (vXd, x3))
    e('v_lshl_add_u32 v%d, v%d, 4, v%d' % (vXd, x2, vXd))
    swz(x2, x0, vHr)
    e('v_xor_b32 v%d, v%d, v%d' % (x2, x2, vG))
    e('v_lshlrev_b32 v%d, 6, v%d' % (vHr, vT))
    e('v_lshl_add_u32 v%d, v%d, 4, v%d' % (vHr, x2, vHr))
    e('s_lshl_b32 s3, s%d, 13' % sW)
    e('s_add_u32 s3, s3, 0x%x' % R)
    e('v_add_u32 v%d, s3, v%d' % (vXr, vHr))
    e('v_add_u32 v%d, 0x%x, v%d' % (vHr, R + 4096, vHr))
    sXslot = S.get()
    e('s_mov_b32 s%d, s3' % sXslot)

    e('s_waitcnt lgkmcnt(0)')
    stamp('karg', 'a')
    for srd, p, size in ((24, 4, 2048 * 1024), (28, 6, 512 * 3072), (36, 20, WS_SIZE), (40, 16, 2048 * 1024), (44, 18, 256)):
        e('s_mov_b32 s%d, s%d\ns_mov_b32 s%d, s%d\ns_mov_b32 s%d, 0x%x\ns_mov_b32 s%d, 0x20000' % (srd, p, srd + 1, p + 1, srd + 2, size, srd + 3))
    e('s_lshl_b32 s3, s%d, 8' % sW)
    e('s_add_u32 s3, s3, s2')
    e('s_mov_b32 s35, 0x20000')
    Lw2, Lw1, Lpp = lab('Lw2'), lab('Lw1'), lab('Lpp')
    e('s_cmp_ge_u32 s3, 128')
    e('s_cbranch_scc1 ' + Lw2)
    e('s_mov_b32 s32, s8\ns_mov_b32 s33, s9\ns_mov_b32 s34, 0x%x' % (512 * 1024))
    e('s_and_b32 s4, s3, 7\ns_lshr_b32 s5, s3, 3')
    e('s_lshl_b32 s20, s5, 15\ns_lshl_b32 s6, s4, 7\ns_add_u32 s20, s20, s6')
    e('s_lshl_b32 s21, s4, 4\ns_add_u32 s21, s21, s5\ns_lshl_b32 s21, s21, 12')
    e('s_mov_b32 s22, 1024\ns_mov_b32 s23, 0')
    e('s_branch ' + Lpp)
    e.label(Lw2)
    e('s_cmp_ge_u32 s3, 472')
    e('s_cbranch_scc1 ' + Lw1)
    e('s_mov_b32 s32, s14\ns_mov_b32 s33, s15\ns_mov_b32 s34, 0x%x' % (1376 * 1024))
    e('s_sub_u32 s3, s3, 128')
    e('s_and_b32 s4, s3, 7\ns_lshr_b32 s5, s3, 3')
    e('s_lshl_b32 s20, s5, 15\ns_lshl_b32 s6, s4, 7\ns_add_u32 s20, s20, s6')
    e('s_mul_i32 s21, s4, 43\ns_add_u32 s21, s21, s5\ns_lshl_b32 s21, s21, 12\ns_add_u32 s21, s21, 0x%x' % W2T)
    e('s_mov_b32 s22, 1024\ns_mov_b32 s23, 0')
    e('s_branch ' + Lpp)
    e.label(Lw1)
    e('s_mov_b32 s32, s12\ns_mov_b32 s33, s13\ns_mov_b32 s34, 0x%x' % (512 * 2752))
    e('s_cmp_ge_u32 s3, 824')
    e('s_cselect_b32 s23, 2, 1')
    e('s_sub_u32 s3, s3, 472')
    e('s_and_b32 s5, s3, 15\ns_lshr_b32 s4, s3, 4')
    e('s_mul_i32 s20, s5, %d\ns_lshl_b32 s6, s4, 7\ns_add_u32 s20, s20, s6' % (32 * 2752))
    e('s_lshl_b32 s21, s4, 5\ns_add_u32 s21, s21, s5\ns_lshl_b32 s21, s21, 11\ns_add_u32 s21, s21, 0x%x' % W1T)
    e('s_mov_b32 s22, 2752')
    e.label(Lpp)
    e('s_mov_b32 s%d, 0x%x' % (sSpin, SPIN))

    e('v_mov_b32 v%d, 0' % x0)
    e('s_lshl_b32 s4, s%d, 2\ns_add_u32 s4, s4, s%d' % (sM, sFlag))
    e('s_add_u32 s5, s4, %d' % (256 + 128 - 32))
    e('s_cmp_eq_u32 s%d, 0\ns_cselect_b32 s4, s4, 0x%x' % (sW, OOB))
    e('s_cmp_ge_u32 s%d, 8\ns_cselect_b32 s5, s5, 0x%x' % (sM, OOB))
    e('s_cmp_eq_u32 s%d, 3\ns_cselect_b32 s4, s5, s4' % sW)
    e('s_mov_b64 exec, 1')
    e('buffer_store_dword v%d, off, %s, s4 sc0 sc1' % (x0, SWS), 'z')
    e('s_mov_b64 exec, -1')
    vRow = V.get(8)
    e('s_lshl_b32 s4, s%d, 7\ns_lshl_b32 s5, s%d, 3\ns_add_u32 s4, s4, s5\ns_lshl_b32 s5, s%d, 1\ns_add_u32 s4, s4, s5' % (sTeam, sM, sW))
    e('s_mov_b32 s%d, s4' % sB[3])
    e('s_lshl_b32 s4, s4, 10')
    ld(vRow, vL16, SX, 4, 0, 'row', aux='')
    ld(vRow + 4, vL16, SX, 4, 1024, 'row', aux='')
    e('s_getpc_b64 s[6:7]')
    e('s_lshr_b32 s5, s2, 3\ns_lshl_b32 s5, s5, 11')
    e('s_lshl_b32 s8, s%d, 9\ns_add_u32 s5, s5, s8' % sW)
    e('v_and_b32 v%d, 3, v%d' % (x0, vL))
    e('v_lshl_add_u32 v%d, v%d, 7, s5' % (x0, x0))
    e('v_min_u32 v%d, CODE_BYTES, v%d' % (x0, x0))
    e('global_load_dword v%d, v%d, s[6:7]' % (x1, x0), 'code')
    vPd = V.get()
    Lnp = lab('Lnp')
    e('v_lshrrev_b32 v%d, 3, v%d' % (x2, vL))
    e('v_and_b32 v%d, 7, v%d' % (x3, vL))
    e('v_mul_lo_u32 v%d, s22, v%d' % (vPd, x2))
    e('v_lshl_add_u32 v%d, v%d, 4, v%d' % (vPd, x3, vPd))
    e('s_cmp_eq_u32 s23, 2')
    e('s_cbranch_scc1 ' + Lnp)
    e('s_lshl_b32 s4, s22, 3')
    for i in range(4):
        e('s_add_u32 m0, s%d, 0x%x' % (sXslot, 32768 + i * 1024))
        e('buffer_load_dwordx4 v%d, %s, s20 offen lds' % (vPd, SPP), None, False)
        if i < 3: e('s_add_u32 s20, s20, s4')
    e.label(Lnp)
    e('v_lshlrev_b32 v%d, 10, v%d' % (vPd, x2))
    e('v_lshl_add_u32 v%d, v%d, 4, v%d' % (vPd, x3, vPd))
    e('s_add_u32 s4, s%d, s%d\ns_lshl_b32 s4, s4, 14\ns_lshl_b32 s5, s%d, 7\ns_add_u32 s4, s4, s5' % (sOwn, sW, sCs))
    dma(vPd, SX, 4, 0, sXslot, 32768 + 4096, 'res')
    dma(vPd, SX, 4, 8192, sXslot, 32768 + 5120, 'res')
    V.put(vPd)
    soff_reset()

    e('s_mul_i32 s%d, s%d, %d\ns_lshl_b32 s4, s%d, 6\ns_add_u32 s%d, s%d, s4' % (sB[0], sW, 32 * 3072, sM, sB[0], sB[0]))
    e('s_mul_i32 s%d, s%d, 6144' % (sB[1], sW))
    e('s_lshl_b32 s%d, s%d, 14' % (sB[2], sTile))

    def w_dma(G):
        out = []
        for sec in range(3):
            for half in range(2):
                def f(sec=sec, half=half):
                    goff = (128 * G + 16 * half) * 3072 + sec * 1024
                    e('s_add_u32 s%d, s%d, 0x%x' % (t5, sB[0], goff))
                    dma(vWd, SWQ, t5, 0, sB[1], G * 24576 + sec * 2048 + half * 1024, ('W', G))
                out.append(f)
        return out

    def x_dma(G):
        out = []
        for a in range(2):
            for j in range(4):
                def f(a=a, j=j):
                    dma(vXd, SX, sB[2], a * 16384 + G * 256 + j * 64, sXslot, (G & 1) * 32768 + (a * 4 + j) * 1024, ('X', G))
                out.append(f)
        return out

    stamp('i0', 'a')
    for f in w_dma(0): f()
    stamp('iW0', 'a')
    for f in x_dma(0): f()
    stamp('iX0', 'a')
    for f in w_dma(1): f()
    stamp('issued')

    vMA = V.get(4)
    vOnes = V.get(4)
    vBias = V.get(4)
    vPoll = V.get(); vStA = V.get(); vVw = V.get(); vL8 = V.get(); vHw = V.get(); vWh = V.get(); vWhH = V.get()
    vCsA = V.get(); vRedW = V.get(3); vRedR = V.get()
    e('v_and_b32 v%d, 1, v%d' % (x0, vT))
    e('v_cmp_eq_u32 s[%d:%d], 1, v%d' % (sPar, sPar + 1, x0))
    e('v_lshl_add_u32 v%d, v%d, 2, v%d' % (x2, vG, x0))
    e('v_cmp_le_u32 s[%d:%d], v%d, v%d' % (sCur0, sCur0 + 1, x2, vT))
    e('v_add_u32 v%d, 2, v%d' % (x2, x2))
    e('v_cmp_le_u32 s[%d:%d], v%d, v%d' % (sCur1, sCur1 + 1, x2, vT))
    e('v_lshlrev_b32 v%d, 4, v%d' % (x0, x0))
    e('v_mov_b32 v%d, 0xffff' % x2)
    e('v_lshlrev_b32 v%d, v%d, v%d' % (x2, x0, x2))
    e('v_cndmask_b32 v%d, v%d, 0, s[%d:%d]' % (vMA + 0, x2, sCur0, sCur0 + 1))
    e('v_cndmask_b32 v%d, v%d, 0, s[%d:%d]' % (vMA + 1, x2, sCur1, sCur1 + 1))
    e('v_cndmask_b32 v%d, 0, v%d, s[%d:%d]' % (vMA + 2, x2, sCur0, sCur0 + 1))
    e('v_cndmask_b32 v%d, 0, v%d, s[%d:%d]' % (vMA + 3, x2, sCur1, sCur1 + 1))
    e('s_cmp_eq_u32 s%d, 0\ns_cselect_b32 s4, 0xf149f2ca, 0' % sTile)
    for i in range(4):
        e('v_mov_b32 v%d, 0x3f803f80' % (vOnes + i))
        e('v_mov_b32 v%d, s4' % (vBias + i))
    e('v_lshlrev_b32 v%d, 2, v%d' % (vPoll, vT))
    e('s_lshr_b32 s4, s%d, 1\ns_lshl_b32 s4, s4, 8\ns_and_b32 s5, s%d, 1\ns_lshl_b32 s5, s5, 3\ns_add_u32 s4, s4, s5' % (sCs, sCs))
    e('v_lshrrev_b32 v%d, 1, v%d' % (x0, vG))
    e('v_lshl_add_u32 v%d, v%d, 2, s4' % (x0, x0))
    e('v_lshl_add_u32 v%d, v%d, 4, v%d' % (vStA, vT, x0))
    e('v_lshlrev_b32 v%d, 3, v%d' % (vL8, vL))
    e('v_lshlrev_b32 v%d, 3, v%d' % (x0, vG))
    e('v_lshl_add_u32 v%d, v%d, 5, v%d' % (x0, vT, x0))
    e('s_lshl_b32 s4, s%d, 11\ns_add_u32 s4, s4, 0x%x' % (sW, VIMG + 1024))
    e('v_add_u32 v%d, s4, v%d' % (vVw, x0))
    e('s_and_b32 s4, s%d, 1\ns_lshl_b32 s4, s4, 9' % sW)
    e('s_add_u32 s5, s4, 0x%x\ns_add_u32 s4, s4, 0x%x' % (KIMG, VIMG))
    e('v_add_u32 v%d, s4, v%d' % (x0, x0))
    e('v_add_u32 v%d, s5, v%d' % (x2, vL8))
    e('s_cmp_lt_u32 s%d, 2\ns_cselect_b64 vcc, -1, 0' % sW)
    e('v_cndmask_b32 v%d, v%d, v%d, vcc' % (vHw, x0, x2))
    e('s_and_b32 s4, s%d, 1\ns_lshl_b32 s4, s4, 5' % sW)
    e('v_xor_b32 v%d, s4, v%d' % (vWh, vWa[0]))
    vWq = V.get()
    e('s_lshr_b32 s4, s%d, 1\ns_mul_i32 s5, s4, 49152' % sW)
    e('v_add_u32 v%d, s5, v%d' % (vWq, vWh))
    e('s_lshl_b32 s4, s4, 11\ns_add_u32 s4, s4, 2048')
    e('v_add_u32 v%d, s4, v%d' % (vWh, vWh))
    e('v_add_u32 v%d, 49152, v%d' % (vWhH, vWh))
    e('v_lshlrev_b32 v%d, 4, v%d' % (vCsA, vG))
    e('v_add_u32 v%d, 0x%x, v%d' % (vCsA, R, vCsA))
    for a in (1, 2, 3):
        e('s_xor_b32 s4, s%d, %d\ns_lshl_b32 s4, s4, 12\ns_add_u32 s4, s4, 0x%x' % (sW, a, R2))
        e('v_add_u32 v%d, s4, v%d' % (vRedW + a - 1, vL16))
    e('s_lshl_b32 s4, s%d, 12\ns_add_u32 s4, s4, 0x%x' % (sW, R2))
    e('v_add_u32 v%d, s4, v%d' % (vRedR, vL16))

    e.wait(vm='row')
    stamp('row', 'a')
    tmp = V.get(12)
    for i in range(2):
        for j in range(4):
            e('v_lshlrev_b32 v%d, 16, v%d' % (tmp + 2 * j, vRow + 4 * i + j))
            e('v_and_b32 v%d, 0xffff0000, v%d' % (tmp + 2 * j + 1, vRow + 4 * i + j))
        sq = tmp + 8 + 2 * i
        e('v_add_f32 v%d, v%d, v%d' % (sq, tmp, tmp + 1))
        e('v_mul_f32 v%d, v%d, v%d' % (sq + 1, tmp, tmp))
        e('v_fmac_f32 v%d, v%d, v%d' % (sq + 1, tmp + 1, tmp + 1))
        for j in range(2, 8):
            e('v_add_f32 v%d, v%d, v%d' % (sq, sq, tmp + j))
            e('v_fmac_f32 v%d, v%d, v%d' % (sq + 1, tmp + j, tmp + j))
    for dpp in ('quad_perm:[1,0,3,2]', 'quad_perm:[2,3,0,1]', 'row_half_mirror'):
        for j in range(4):
            e('v_add_f32_dpp v%d, v%d, v%d %s row_mask:0xf bank_mask:0xf' % (tmp + 8 + j, tmp + 8 + j, tmp + 8 + j, dpp))
    e('v_lshlrev_b32 v%d, 8, v%d' % (x0, vG))
    e('v_and_b32 v%d, 8, v%d' % (x2, vL))
    e('v_add_u32 v%d, v%d, v%d' % (x0, x0, x2))
    e('s_lshr_b32 s4, s%d, 4\ns_lshl_b32 s4, s4, 10\ns_and_b32 s5, s%d, 15\ns_lshl_b32 s5, s5, 4\ns_add_u32 s4, s4, s5\ns_add_u32 s4, s4, 0x%x' % (sB[3], sB[3], ST0))
    e('s_mov_b32 exec_lo, 0x01010101\ns_mov_b32 exec_hi, 0x01010101')
    st(tmp + 8, x0, SWS, 4, 0, 'z', ' sc0 sc1', n=2)
    st(tmp + 10, x0, SWS, 4, 16, 'z', ' sc0 sc1', n=2)
    e('s_mov_b64 exec, -1')
    V.put(vRow, 8); V.put(tmp, 12)

    e.wait(vm='res')
    stamp('res', 'a')
    vRes = V.get(16)
    tmp = V.get(16)
    e('v_lshlrev_b32 v%d, 7, v%d' % (x0, vT))
    e('v_lshl_add_u32 v%d, v%d, 4, v%d' % (x0, vG, x0))
    e('v_add_u32 v%d, s%d, v%d' % (x0, sXslot, x0))
    e('ds_read_b128 %s, v%d offset:%d' % (vr(tmp, 4), x0, 32768 + 4096))
    e('ds_read_b128 %s, v%d offset:%d' % (vr(tmp + 4, 4), x0, 32768 + 4096 + 64))
    e.wait(lg='all')
    for j in range(8):
        e('v_lshlrev_b32 v%d, 16, v%d' % (vRes + 2 * j, tmp + j))
        e('v_and_b32 v%d, 0xffff0000, v%d' % (vRes + 2 * j + 1, tmp + j))
    LB, Lst, Lno = lab('LB'), lab('Lst'), lab('Lno')
    e('v_bfe_u32 v%d, v%d, 2, 2' % (x2, vL))
    e('v_and_b32 v%d, 3, v%d' % (x3, vL))
    e('s_cmp_eq_u32 s23, 2')
    e('s_cbranch_scc1 ' + Lno)
    e('s_cmp_eq_u32 s23, 1')
    e('s_cbranch_scc1 ' + LB)
    e('v_lshl_add_u32 v%d, v%d, 2, v%d' % (x0, vG, x2))
    e('v_lshlrev_b32 v%d, 7, v%d' % (x0, x0))
    e('v_lshl_add_u32 v%d, v%d, 4, v%d' % (x0, x3, x0))
    e('v_add_u32 v%d, s%d, v%d' % (x0, sXslot, x0))
    for u in range(2):
        for b in range(2):
            for hh in range(2):
                e('ds_read_b64_tr_b16 %s, v%d offset:%d' % (vr(tmp + 8 * u + 4 * b + 2 * hh, 2), x0, 32768 + hh * 2048 + 64 * u + 8 * b), None, False)
    e('s_mov_b32 s5, 2048')
    e('s_branch ' + Lst)
    e.label(LB)
    e('v_lshl_add_u32 v%d, v%d, 3, v%d' % (x0, vG, x2))
    e('v_lshlrev_b32 v%d, 7, v%d' % (x0, x0))
    e('v_lshl_add_u32 v%d, v%d, 3, v%d' % (x0, x3, x0))
    e('v_add_u32 v%d, s%d, v%d' % (x0, sXslot, x0))
    for u in range(2):
        for b in range(2):
            for hh in range(2):
                e('ds_read_b64_tr_b16 %s, v%d offset:%d' % (vr(tmp + 8 * u + 4 * b + 2 * hh, 2), x0, 32768 + hh * 512 + 64 * u + 32 * b), None, False)
    e('s_mov_b32 s5, 32768')
    e.label(Lst)
    e('s_add_u32 s5, s5, s21')
    e('s_waitcnt lgkmcnt(0)')
    st(tmp, vL16, SWS, 21, 0, None, ' sc0 sc1', track=False)
    st(tmp + 4, vL16, SWS, 21, 1024, None, ' sc0 sc1', track=False)
    st(tmp + 8, vL16, SWS, 5, 0, None, ' sc0 sc1', track=False)
    st(tmp + 12, vL16, SWS, 5, 1024, None, ' sc0 sc1', track=False)
    e.label(Lno)
    V.put(tmp, 16)
    stamp('ppst', 'a')
    for f in x_dma(1) + w_dma(2): f()
    stamp('prepass')

    def stats_items(src, dst):
        it = []
        A = it.append
        A(lambda: e('v_pk_add_f32 %s, %s, %s' % (vr(src, 2), vr(src, 2), vr(src + 2, 2))))
        A(lambda: e('v_permlane32_swap_b32 v%d, v%d' % (src, src + 1)))
        A(lambda: e('v_add_f32 v%d, v%d, v%d' % (src, src, src + 1)))
        A(lambda: e('v_mov_b32 v%d, v%d' % (src + 1, src)))
        A(lambda: e('v_permlane16_swap_b32 v%d, v%d' % (src, src + 1)))
        A(lambda: e('v_add_f32 v%d, v%d, v%d' % (src, src, src + 1)))
        A(lambda: e('v_mov_b32 v%d, v%d' % (src + 1, src)))
        A(lambda: e('v_permlane32_swap_b32 v%d, v%d' % (src, src + 1)))
        A(lambda: e('v_mul_f32 v%d, 0xbb000000, v%d' % (dst, src)))
        A(lambda: e('v_mul_f32 v%d, 0x3b000000, v%d' % (src + 1, src + 1)))
        A(lambda: e('v_fma_f32 v%d, -v%d, v%d, v%d' % (src + 1, dst, dst, src + 1)))
        A(lambda: e('v_max_f32 v%d, 0, v%d' % (src + 1, src + 1)))
        A(lambda: e('v_add_f32 v%d, 0x3727c5ac, v%d' % (src + 1, src + 1)))
        A(lambda: e('v_rsq_f32 v%d, v%d' % (dst + 1, src + 1)))
        return it

    def zipitems(*lists):
        out = []
        for i in range(max(len(l) for l in lists)):
            for l in lists:
                if i < len(l): out.append(l[i])
        return out

    def ln_tile(acc, cs, mr, out, scale=True, relu=False):
        it = []
        for h in range(2):
            it.append(lambda h=h: e('v_pk_fma_f32 %s, %s, %s, %s op_sel:[0,0,0] op_sel_hi:[1,0,1]' % (vr(acc + 2 * h, 2), vr(cs + 2 * h, 2), vr(mr, 2), vr(acc + 2 * h, 2))))
        if scale:
            for h in range(2):
                it.append(lambda h=h: e('v_pk_mul_f32 %s, %s, %s op_sel:[0,1] op_sel_hi:[1,1]' % (vr(acc + 2 * h, 2), vr(acc + 2 * h, 2), vr(mr, 2))))
        for h in range(2):
            it.append(lambda h=h: e('v_cvt_pk_bf16_f32 v%d, v%d, v%d' % (out + h, acc + 2 * h, acc + 2 * h + 1)))
        if relu:
            for h in range(2):
                it.append(lambda h=h: e('v_pk_max_i16 v%d, v%d, 0' % (out + h, out + h)))
        return it

    def team_sync(p, tag, after_flag=None):
        flush_stamps()
        e.wait(vm=tag)
        stamp('acked')
        e('s_barrier')
        Ln, Lp, Lq = lab('Ln'), lab('Lp'), lab('Lq')
        e('s_cmp_lg_u32 s%d, 0' % sW)
        e('s_cbranch_scc1 ' + Ln)
        e('v_mov_b32 v%d, %d' % (x0, p))
        e('s_lshl_b32 s4, s%d, 2\ns_add_u32 s4, s4, s%d' % (sM, sFlag))
        e('s_mov_b64 exec, 1')
        e('buffer_store_dword v%d, off, %s, s4%s' % (x0, SWS, AUX), None, False)
        e('s_mov_b64 exec, -1')
        e.label(Lp)
        e('buffer_load_dword v%d, v%d, %s, s%d offen sc1' % (x0, vPoll, SWS, sFlag), None, False)
        e('s_waitcnt vmcnt(0)')
        e('v_cmp_gt_u32 vcc, %d, v%d' % (p, x0))
        e('s_cbranch_vccz ' + Ln)
        spin_guard(Lp)
        e.label(Ln)
        e('s_barrier')
        stamp('synced')

    def w1_dma(ks, first, tag):
        out = []
        base = (SLOT0 + (ks % 10) * 6144) if first else ks * 6144
        for j in range(3):
            for b in range(2):
                out.append((j * 32768 + ks * 2048 + b * 1024, base + j * 2048 + b * 1024))
        return out

    def w1_issue(kss, first, tag):
        items = []
        assert len(kss) % 2 == 0
        for i in range(0, len(kss), 2):
            ks = kss[i]
            assert kss[i + 1] == ks + 1 and (not first or ks % 10 != 9)
            base = (SLOT0 + (ks % 10) * 6144) if first else ks * 6144
            for j in range(3):
                items.append(lambda ks=ks, j=j, base=base: dma(vL16, SWS, sW1g, j * 32768 + ks * 2048, sW1l, base + j * 2048, tag, aux=' sc1'))
        return items

    sW1g = S.get(); sW1l = S.get()

    def P1(first):
        acc = V.get(48); hacc = V.get(4)
        WF = V.get(48); XR = V.get(64)
        stt = V.get(12); mr = V.get(6)
        cacc = V.get(8) if first else None
        A = lambda a, c: acc + (a * 6 + c) * 4
        wf = lambda ks, c: WF + ((ks & 1) * 6 + c) * 4
        xr = lambda ks, a: XR + ((ks % 8) * 2 + a) * 4
        soff_reset()

        def wreads(ks):
            out = []
            for c in range(6):
                for h in range(2):
                    def f(c=c, h=h):
                        base = vWa if ks < 8 else vWaH
                        e('ds_read_b64_tr_b16 %s, v%d offset:%d' % (vr(wf(ks, c) + 2 * h, 2), base[c & 1], (ks & 7) * 6144 + (c >> 1) * 2048 + h * 256), ('w', ks, c))
                    out.append(f)
            return out

        def xreads(G):
            out = []
            for j in range(4):
                for a in range(2):
                    out.append(lambda a=a, j=j: e('ds_read_b128 %s, v%d offset:%d' % (vr(xr(4 * G + j, a), 4), vXr, (G & 1) * 32768 + (a * 4 + j) * 1024), ('x', G)))
            return out

        def xload(ks):
            return [lambda a=a: ld(xr(ks, a), vL16, SWS, sB[2], a * 16384 + ks * 1024, ('X', ks)) for a in range(2)]

        def halo_dma():
            out = []
            for j in range(4):
                if first: out.append(lambda j=j: dma(vXd, SX, sB[3], j * 64, sXslot, 4096 + j * 1024, 'halo'))
                else: out.append(lambda j=j: dma(vL16, SWS, sB[3], j * 1024, sXslot, 4096 + j * 1024, 'halo', aux=' sc1'))
            return out

        LOOK = 5
        if first:
            e('s_lshl_b32 s4, s%d, 17\ns_sub_u32 s4, s4, 16384\ns_lshl_b32 s5, s%d, 8\ns_add_u32 s4, s4, s5' % (sTeam, sW))
            e('s_cmp_eq_u32 s%d, 0\ns_cselect_b32 s%d, 0x%x, s4' % (sTeam, sB[3], OOB))
            e.wait(vm=[('W', 0), ('X', 0)])
            e('s_barrier')
            stamp('g0', 'a')
            for f in zipitems(wreads(0), xreads(0)): f()
            e.wait(lg=('x', 0))
            for f in x_dma(2) + w_dma(3): f()
        else:
            e('s_lshl_b32 s%d, s%d, 14\ns_add_u32 s%d, s%d, 0x%x' % (sB[2], sTile, sB[2], sB[2], X2F))
            for ks in range(LOOK):
                for f in xload(ks): f()
            e('s_lshl_b32 s4, s%d, 10\ns_add_u32 s4, s4, 0x%x' % (sTile, ST2))
            ld(stt, vL16, SWS, 4, 0, 'st')
            ld(stt + 4, vL16, SWS, 4, 1024, 'st')
            e('s_lshl_b32 s4, s%d, 15\ns_add_u32 s4, s4, 0x%x' % (sTeam, HALO))
            e('s_add_u32 s%d, s4, 16384' % sB[0])
            e('s_lshl_b32 s5, s%d, 12\ns_add_u32 s4, s4, s5' % sW)
            e('s_cmp_eq_u32 s%d, 0\ns_cselect_b32 s%d, 0x%x, s4\ns_cselect_b32 s%d, 0x%x, s%d' % (sTeam, sB[3], OOB, sB[0], OOB, sB[0]))
            e('v_add_u32 v%d, 0x%x, v%d' % (vHr, R + 4096, vL16))
            for f in wreads(0): f()
        stamp('p1start')

        for ks in range(16):
            stamp('k%d' % ks, 'a' if first else 'b')
            pre = []; fill = []
            if first and ks % 4 == 3 and ks < 15:
                G = ks // 4 + 1
                e.wait(vm=[('W', G), ('X', G)])
                e('s_barrier')
                if G == 1:
                    La = lab('La')
                    e('s_cmp_lg_u32 s%d, 0' % sW)
                    e('s_cbranch_scc1 ' + La)
                    e('s_getreg_b32 s4, hwreg(HW_REG_XCC_ID, 0, 4)')
                    e('s_mul_i32 s5, s4, s4\ns_lshl_b32 s5, s5, 16\ns_lshl_b32 s4, s4, 8\ns_add_u32 s4, s4, s5\ns_add_u32 s4, s4, 1')
                    e('v_mov_b32 v%d, s4' % x0)
                    e('s_lshl_b32 s4, s%d, 4' % sTeam)
                    e('s_mov_b64 exec, 1')
                    e('buffer_atomic_add v%d, off, %s, s4 sc1' % (x0, SDBG), None, False)
                    e('s_mov_b64 exec, -1')
                    e.label(La)
                fill = zipitems(wreads(ks + 1), xreads(G))
            elif ks < 15:
                fill = wreads(ks + 1)
            if first and ks == 4:
                e.wait(lg=('x', 1))
                fill = zipitems(fill, x_dma(3))
            if first and ks == 8:
                e.wait(lg=('x', 2))
                fill = zipitems(fill, halo_dma())
            if first and ks == 9:
                e('v_lshlrev_b32 v%d, 4, v%d' % (x2, vT))
                e('buffer_load_dword v%d, v%d, %s, 0 offen sc1' % (x1, x2, SDBG), 'gp')
            if first and ks == 12:
                Lg, Lh = lab('Lg'), lab('Lh')
                e.wait(vm='gp')
                e.label(Lg)
                e('v_and_b32 v%d, 0xff, v%d' % (x0, x1))
                e('v_cmp_ne_u32 vcc, 16, v%d' % x0)
                e('s_cbranch_vccz ' + Lh)
                e('buffer_load_dword v%d, v%d, %s, 0 offen sc1' % (x1, x2, SDBG), None, False)
                e('s_waitcnt vmcnt(0)')
                spin_guard(Lg)
                e.label(Lh)
                e('v_readlane_b32 s6, v%d, s%d' % (x1, sTeam))
                e('s_getreg_b32 s4, hwreg(HW_REG_XCC_ID, 0, 4)')
                e('s_mul_i32 s5, s4, s4\ns_lshl_b32 s5, s5, 16\ns_lshl_b32 s4, s4, 8\ns_add_u32 s4, s4, s5\ns_add_u32 s4, s4, 1\ns_lshl_b32 s4, s4, 4')
                if cfg.force_slow: e('s_mov_b32 s4, 0')
                e('s_cmp_eq_u32 s4, s6')
                e('s_cbranch_scc0 L_fork_s')
                e.label('L_fork' + sfx)
                e('s_lshl_b32 s4, s%d, 10\ns_add_u32 s4, s4, 0x%x' % (sTile, ST0))
                ld(stt, vL16, SWS, 4, 0, 'st')
                ld(stt + 4, vL16, SWS, 4, 1024, 'st')
                e('s_lshl_b32 s4, s%d, 13\ns_add_u32 s4, s4, 0x%x' % (sTeam, ST0 - 1024))
                e('s_cmp_eq_u32 s%d, 0\ns_cselect_b32 s4, 0x%x, s4' % (sTeam, OOB))
                ld(stt + 8, vL16, SWS, 4, 0, 'sth')
                e('s_lshl_b32 s%d, s%d, 16\ns_lshl_b32 s4, s%d, 14\ns_add_u32 s%d, s%d, s4' % (sB[0], sCs, sW, sB[0], sB[0]))
                soff_reset()
            if first and ks >= 12:
                j = ks - 12
                fill = zipitems(fill, [lambda c=c: ld(16 * j + 4 * c, vL16, SWS, sB[0], WOT + j * 4096 + c * 1024, 'wo', kind='a') for c in range(4)])
            if not first:
                if ks + LOOK < 16: fill = zipitems(fill, xload(ks + LOOK))
                if ks == 5:
                    e('s_add_u32 s4, s%d, 128' % sFlag)
                    e('v_and_b32 v%d, 28, v%d' % (x2, vPoll))
                    e('buffer_load_dword v%d, v%d, %s, s4 offen sc1' % (x1, x2, SWS), 'hp')
                if ks == 4:
                    e.wait(vm='st')
                    fill = zipitems(fill, stats_items(stt, mr))
                if ks == 6:
                    fill = zipitems(fill, stats_items(stt + 4, mr + 2))
                if ks == 9:
                    Lg, Lh = lab('Lg'), lab('Lh')
                    e.wait(vm='hp')
                    e('s_cmp_eq_u32 s%d, 0' % sTeam)
                    e('s_cbranch_scc1 ' + Lh)
                    e.label(Lg)
                    e('v_cmp_ne_u32 vcc, 1, v%d' % x1)
                    e('s_cbranch_vccz ' + Lh)
                    e('s_add_u32 s4, s%d, 128' % sFlag)
                    e('buffer_load_dword v%d, v%d, %s, s4 offen sc1' % (x1, x2, SWS), None, False)
                    e('s_waitcnt vmcnt(0)')
                    spin_guard(Lg)
                    e.label(Lh)
                    fill = zipitems(fill, halo_dma() + [lambda: ld(stt + 8, vL16, SWS, sB[0], 0, 'sth')])
                e.wait(vm=('X', ks))
            elif ks % 4 == 0:
                e.wait(lg=('x', ks // 4))
            main = []
            for c in range(6):
                for a in range(2):
                    def f(c=c, a=a):
                        if a == 0 and c in (0, 3): e.wait(lg=('w', ks, c + 2))
                        mfma(A(a, c), wf(ks, c), xr(ks, a), None if ks == 0 else A(a, c))
                    main.append(f)
            weave(main, fill, 0, 2 if len(fill) > 12 else 1)
        stamp('p1gemm')

        e.wait(vm=['halo', 'sth'])
        e('s_barrier')
        D = 4
        hw = lambda ks: WF + (ks % D) * 4
        hx = lambda ks: WF + 16 + (ks % D) * 4
        hq = lambda ks: WF + 32 + (ks % D) * 4

        def hreads(ks):
            base = vWh if ks < 8 else vWhH
            for h in range(2):
                e('ds_read_b64_tr_b16 %s, v%d offset:%d' % (vr(hw(ks) + 2 * h, 2), base, (ks & 7) * 6144 + h * 256), ('h', ks))
            e('ds_read_b128 %s, v%d offset:%d' % (vr(hx(ks), 4), vHr, (ks >> 2) * 8192 + (ks & 3) * 1024), ('h', ks))
            if first and ks < 8:
                for h in range(2):
                    e('ds_read_b64_tr_b16 %s, v%d offset:%d' % (vr(hq(ks) + 2 * h, 2), vWq, ks * 6144 + h * 256), ('h', ks))
        sti = stats_items(stt + 8, mr + 4)
        if first: sti = zipitems(stats_items(stt, mr), stats_items(stt + 4, mr + 2), sti)
        for ks in range(D - 1): hreads(ks)
        for ks in range(16):
            e.wait(lg=('h', ks))
            mfma(hacc, hw(ks), hx(ks), None if ks == 0 else hacc)
            if first:
                mfma(cacc, hw(ks), vOnes, None if ks == 0 else cacc)
                if ks < 8: mfma(cacc + 4, hq(ks), vOnes, None if ks == 0 else cacc + 4)
            if ks + D - 1 < 16: hreads(ks + D - 1)
            for _ in range(3 if first else 1):
                if sti: sti.pop(0)()
        for f in sti: f()
        if first:
            e('s_lshl_b32 s4, s%d, 6' % sW)
            e('v_add_u32 v%d, s4, v%d' % (x0, vCsA))
            e('s_lshr_b32 s4, s%d, 1\ns_mul_i32 s4, s4, 6\ns_and_b32 s5, s%d, 1\ns_add_u32 s4, s4, s5\ns_lshl_b32 s4, s4, 6' % (sW, sW))
            e('v_add_u32 v%d, s4, v%d' % (x2, vCsA))
            e('s_mov_b32 exec_lo, 0x00010001\ns_mov_b32 exec_hi, 0x00010001')
            e('ds_write_b128 v%d, %s offset:128' % (x0, vr(cacc, 4)))
            e('ds_write_b128 v%d, %s' % (x2, vr(cacc + 4, 4)))
            e('s_mov_b64 exec, -1')
            e.wait(lg='all')
        e('s_barrier')
        e('s_lshl_b32 s%d, s%d, 15\ns_lshl_b32 s4, s%d, 10\ns_add_u32 s%d, s%d, s4\ns_add_u32 s%d, s%d, 0x%x' % (sW1g, sU0, sW, sW1g, sW1g, sW1g, sW1g, W1T))
        e('s_lshr_b32 s4, s%d, 1\ns_mul_i32 s4, s4, 6144\ns_and_b32 s5, s%d, 1\ns_lshl_b32 s5, s5, 10\ns_add_u32 s%d, s4, s5' % (sW, sW, sW1l))
        soff_reset()
        cs = WF
        hcs = WF + 32
        for j in (2, 3, 4, 5, 0, 1, 6, 7):
            e('ds_read_b128 %s, v%d offset:%d' % (vr(cs + 4 * j, 4), vCsA, j * 64), ('cs', j))
        e('s_lshl_b32 s4, s%d, 6' % sW)
        e('v_add_u32 v%d, s4, v%d' % (x0, vCsA))
        e('ds_read_b128 %s, v%d offset:128' % (vr(hcs, 4), x0), 'hcs')
        dm = w1_issue(list(range(4 if first else 16)), first, 'w1a')
        kq = XR
        qq = XR + 8
        vv = XR + 16
        hh_ = XR + 24
        kp = XR + 26
        vt = XR + 30
        e.wait(lg=('cs', 5))
        it = []
        for a in range(2):
            for b in range(2):
                it += ln_tile(A(a, 4 + b), cs + 4 * (4 + b), mr + 2 * a, vv + 4 * a + 2 * b)
                it.append(lambda a=a, b=b: e('ds_write_b64 v%d, %s offset:%d' % (vVw, vr(vv + 4 * a + 2 * b, 2), a * 1024 + b * 512)))
        e('s_lshl_b32 s4, s%d, 10\ns_add_u32 s4, s4, 0x%x' % (sW, KIMG))
        e('v_add_u32 v%d, s4, v%d' % (x3, vL8))
        for b in range(2):
            it += ln_tile(A(1, 2 + b), cs + 4 * (2 + b), mr + 2, kq + 4 + 2 * b)
            it.append(lambda b=b: e('ds_write_b64 v%d, %s offset:%d' % (x3, vr(kq + 4 + 2 * b, 2), 1024 + b * 512)))
        it.append(lambda: e.wait(lg='hcs'))
        it += ln_tile(hacc, hcs, mr + 4, hh_)
        it.append(lambda: e('ds_write_b64 v%d, %s' % (vHw, vr(hh_, 2))))
        weave(it, dm, 0, 1)
        for b in range(2):
            for f in ln_tile(A(0, 2 + b), cs + 4 * (2 + b), mr, kq + 2 * b): f()
        e.wait(lg='all')
        e('s_barrier')
        e('s_lshl_b32 s4, s%d, 11\ns_add_u32 s4, s4, 0x%x' % (sW, VIMG))
        e('v_add_u32 v%d, s4, v%d' % (x2, vL8))
        for b in range(2):
            e('ds_read_b64 %s, v%d offset:%d' % (vr(kp + 2 * b, 2), x3, b * 512), 'kp')
        for b in range(2):
            for i in range(3):
                e('ds_read_b64_tr_b16 %s, v%d offset:%d' % (vr(vt + 6 * b + 2 * i, 2), x2, i * 1024 + b * 512), 'vt')
        for b in range(2):
            for h in range(2):
                e('v_pk_add_f32 %s, %s, %s' % (vr(cs + 4 * b + 2 * h, 2), vr(cs + 4 * b + 2 * h, 2), vr(cs + 24 + 4 * b + 2 * h, 2)))
        for a in range(2):
            for b in range(2):
                for f in ln_tile(A(a, b), cs + 4 * b, mr + 2 * a, qq + 4 * a + 2 * b, scale=False): f()
        for a in range(2):
            e('v_mul_f32 v%d, 0x3eb8aa3b, v%d' % (mr + 2 * a + 1, mr + 2 * a + 1))
        e.wait(lg='kp')
        prs = [(a, b) for a in range(2) for b in range(2)]
        Sp = lambda i: acc + 8 * i
        Sc = lambda i: acc + 8 * i + 4
        for i, (a, b) in enumerate(prs):
            kprev = kp + 2 * b if a == 0 else kq + 2 * b
            e('v_mfma_f32_16x16x16_bf16 %s, %s, %s, %s' % (vr(Sp(i), 4), vr(kprev, 2), vr(qq + 4 * a + 2 * b, 2), vr(vBias, 4) if a == 0 else '0'))
            e('v_mfma_f32_16x16x16_bf16 %s, %s, %s, 0' % (vr(Sc(i), 4), vr(kq + 4 * a + 2 * b, 2), vr(qq + 4 * a + 2 * b, 2)))
        T = lambda i: WF + 8 * i
        P = lambda i: acc + 32 + 4 * i
        par = 's[%d:%d]' % (sPar, sPar + 1); c0 = 's[%d:%d]' % (sCur0, sCur0 + 1); c1 = 's[%d:%d]' % (sCur1, sCur1 + 1)
        steps = [
            lambda i, a: e('v_cndmask_b32 v%d, v%d, v%d, %s' % (T(i), Sp(i), Sp(i) + 1, par)),
            lambda i, a: e('v_cndmask_b32 v%d, v%d, v%d, %s' % (T(i) + 1, Sp(i) + 2, Sp(i) + 3, par)),
            lambda i, a: e('v_cndmask_b32 v%d, v%d, v%d, %s' % (T(i) + 2, Sc(i), Sc(i) + 1, par)),
            lambda i, a: e('v_cndmask_b32 v%d, v%d, v%d, %s' % (T(i) + 3, Sc(i) + 2, Sc(i) + 3, par)),
            lambda i, a: e('v_cndmask_b32 v%d, v%d, v%d, %s' % (T(i), T(i), T(i) + 2, c0)),
            lambda i, a: e('v_cndmask_b32 v%d, v%d, v%d, %s' % (T(i) + 1, T(i) + 1, T(i) + 3, c1)),
            lambda i, a: e('v_max_f32 v%d, v%d, v%d' % (T(i) + 2, T(i), T(i) + 1)),
            lambda i, a: e('v_mov_b32 v%d, v%d' % (T(i) + 3, T(i) + 2)),
            lambda i, a: e('v_permlane32_swap_b32 v%d, v%d' % (T(i) + 2, T(i) + 3)),
            lambda i, a: e('v_max_f32 v%d, v%d, v%d' % (T(i) + 2, T(i) + 2, T(i) + 3)),
            lambda i, a: e('v_mov_b32 v%d, v%d' % (T(i) + 3, T(i) + 2)),
            lambda i, a: e('v_permlane16_swap_b32 v%d, v%d' % (T(i) + 2, T(i) + 3)),
            lambda i, a: e('v_max_f32 v%d, v%d, v%d' % (T(i) + 2, T(i) + 2, T(i) + 3)),
            lambda i, a: e('v_sub_f32 v%d, v%d, v%d' % (T(i), T(i), T(i) + 2)),
            lambda i, a: e('v_sub_f32 v%d, v%d, v%d' % (T(i) + 1, T(i) + 1, T(i) + 2)),
            lambda i, a: e('v_pk_mul_f32 %s, %s, %s op_sel:[0,1] op_sel_hi:[1,1]' % (vr(T(i), 2), vr(T(i), 2), vr(mr + 2 * a, 2))),
            lambda i, a: e('v_exp_f32 v%d, v%d' % (T(i), T(i))),
            lambda i, a: e('v_exp_f32 v%d, v%d' % (T(i) + 1, T(i) + 1)),
            lambda i, a: e('v_cvt_pk_bf16_f32 v%d, v%d, v%d' % (T(i), T(i), T(i))),
            lambda i, a: e('v_cvt_pk_bf16_f32 v%d, v%d, v%d' % (T(i) + 1, T(i) + 1, T(i) + 1)),
            lambda i, a: e('v_and_b32 v%d, v%d, v%d' % (P(i), vMA, T(i))),
            lambda i, a: e('v_and_b32 v%d, v%d, v%d' % (P(i) + 1, vMA + 1, T(i) + 1)),
            lambda i, a: e('v_and_b32 v%d, v%d, v%d' % (P(i) + 2, vMA + 2, T(i))),
            lambda i, a: e('v_and_b32 v%d, v%d, v%d' % (P(i) + 3, vMA + 3, T(i) + 1)),
        ]
        for s_ in steps:
            for i, (a, b) in enumerate(prs): s_(i, a)
        e.wait(lg='vt')
        for i, (a, b) in enumerate(prs):
            mfma(Sc(i), vOnes, P(i), None)
            mfma(Sp(i), vt + 6 * b + 2 * a, P(i), None)
        for i in range(4): e('v_rcp_f32 v%d, v%d' % (Sc(i), Sc(i)))
        e('s_lshl_b32 s4, s%d, 14\ns_lshl_b32 s5, s%d, 10\ns_add_u32 s4, s4, s5\ns_add_u32 s4, s4, 0x%x\ns_add_u32 s5, s4, 16384' % (sTile, sM, OF))
        for i, (a, b) in enumerate(prs):
            for h in range(2):
                e('v_pk_mul_f32 %s, %s, %s op_sel:[0,0] op_sel_hi:[1,0]' % (vr(Sp(i) + 2 * h, 2), vr(Sp(i) + 2 * h, 2), vr(Sc(i), 2)))
            for h in range(2):
                e('v_cvt_pk_bf16_f32 v%d, v%d, v%d' % (XR + 2 * i + h, Sp(i) + 2 * h, Sp(i) + 2 * h + 1))
            if b == 1: st(XR + 4 * a, vL16, SWS, 4 + a, 0, 'o', AUX)
        stamp('p1end')
        for r_, n_ in ((acc, 48), (hacc, 4), (WF, 48), (XR, 64), (stt, 12), (mr, 6)): V.put(r_, n_)
        if first: V.put(cacc, 8)

    def PK(nks, abase, src, tstride, dstf, dsts, last, halo, extra=None):
        NR = 16
        XR = V.get(4 * NR); acc = V.get(32); rd = V.get(16); pk = V.get(8); sq = V.get(4)
        soff_reset()
        order = [(a, s) for a in (3, 2, 1, 0) for s in range(nks)]
        e('s_mul_i32 s4, s%d, %d\ns_add_u32 s4, s4, 0x%x' % (sW, nks * 1024, src))
        for a in range(4):
            e('s_xor_b32 s5, s%d, %d\ns_add_u32 s5, s5, s%d\ns_mul_i32 s5, s5, %d\ns_add_u32 s%d, s5, s4' % (sW, a, sOwn, tstride, sB[a]))

        def load(i):
            a, s = order[i]
            if nks == 11 and s == 10:
                e('s_add_u32 s4, s%d, 10240\ns_cmp_eq_u32 s%d, 3\ns_cselect_b32 s4, 0x%x, s4' % (sB[a], sW, OOB))
                ld(XR + 4 * (i % NR), vL16, SWS, 4, 0, ('x', i))
            else:
                ld(XR + 4 * (i % NR), vL16, SWS, sB[a], s * 1024, ('x', i))
        LOOK = 12
        for i in range(min(LOOK, len(order))): load(i)
        ac = lambda a, c: acc + (a & 1) * 16 + 4 * c
        pend = []
        for i, (a, s) in enumerate(order):
            e.wait(vm=('x', i))
            if s == 0 and a < 3:
                p = a + 1
                bo = 16384 if p == 2 else 0
                pend = [None, None]
                pend += [lambda c=c, p=p, bo=bo: e('ds_write_b128 v%d, %s offset:%d' % (vRedW + p - 1, vr(ac(p, c), 4), bo + c * 1024), 'rw') for c in range(4)]
                pend += [None] * (6 if nks > 4 else 2)
                pend += [lambda: (e.wait(lg='all'), e('s_barrier'))]
                pend += [lambda c=c, bo=bo: e('ds_read_b128 %s, v%d offset:%d' % (vr(rd + 4 * c, 4), vRedR, bo + c * 1024), 'rr') for c in range(4)]
                pend += [None] * (4 if nks > 4 else 0)
                pend += [lambda: e.wait(lg='rr')]
                pend += [lambda j=j: e('v_pk_add_f32 %s, %s, %s' % (vr(vRes + 2 * j, 2), vr(vRes + 2 * j, 2), vr(rd + 2 * j, 2))) for j in range(8)]
            for c in range(4):
                mfma(ac(a, c), abase + 16 * s + 4 * c, XR + 4 * (i % NR), None if s == 0 else ac(a, c), 'a')
                if pend:
                    f = pend.pop(0)
                    if f: f()
            if i + LOOK < len(order): load(i + LOOK)
            if s == nks - 1:
                for f in pend:
                    if f: f()
                pend = []
        stamp('gemm')
        if extra: extra()
        if last:
            e('s_add_u32 s4, s%d, s%d\ns_lshl_b32 s4, s4, 14\ns_lshl_b32 s5, s%d, 7\ns_add_u32 s4, s4, s5' % (sOwn, sW, sCs))
            e('v_lshlrev_b32 v%d, 10, v%d' % (x0, vT))
            e('v_lshl_add_u32 v%d, v%d, 4, v%d' % (x0, vG, x0))
        else:
            e('s_add_u32 s6, s%d, s%d\ns_lshl_b32 s4, s6, 14\ns_lshl_b32 s5, s%d, 11\ns_add_u32 s4, s4, s5\ns_add_u32 s4, s4, 0x%x' % (sOwn, sW, sCs, dstf))
            e('s_lshl_b32 s6, s6, 10\ns_add_u32 s6, s6, 0x%x' % dsts)
        for u in range(2):
            for j in range(4 * u, 4 * u + 4):
                e('v_pk_add_f32 %s, %s, %s' % (vr(vRes + 2 * j, 2), vr(vRes + 2 * j, 2), vr(acc + 2 * j, 2)))
            for j in range(4 * u, 4 * u + 4):
                e('v_cvt_pk_bf16_f32 v%d, v%d, v%d' % (pk + j, vRes + 2 * j, vRes + 2 * j + 1))
            if last: st(pk + 4 * u, x0, SOUT, 4, 64 * u, 'o', '')
            else: st(pk + 4 * u, vL16, SWS, 4, 1024 * u, 'o', AUX)
        if not last:
            e('v_pk_add_f32 %s, %s, %s' % (vr(sq, 2), vr(vRes, 2), vr(vRes + 2, 2)))
            e('v_pk_mul_f32 %s, %s, %s' % (vr(sq + 2, 2), vr(vRes, 2), vr(vRes, 2)))
            e('v_pk_fma_f32 %s, %s, %s, %s' % (vr(sq + 2, 2), vr(vRes + 2, 2), vr(vRes + 2, 2), vr(sq + 2, 2)))
            for j in range(2, 8):
                e('v_pk_add_f32 %s, %s, %s' % (vr(sq, 2), vr(sq, 2), vr(vRes + 2 * j, 2)))
                e('v_pk_fma_f32 %s, %s, %s, %s' % (vr(sq + 2, 2), vr(vRes + 2 * j, 2), vr(vRes + 2 * j, 2), vr(sq + 2, 2)))
            e('v_add_f32 v%d, v%d, v%d' % (sq, sq, sq + 1))
            e('v_add_f32 v%d, v%d, v%d' % (sq + 1, sq + 2, sq + 3))
            e('v_permlane32_swap_b32 v%d, v%d' % (sq, sq + 1))
            e('v_add_f32 v%d, v%d, v%d' % (sq, sq, sq + 1))
            e('v_mov_b32 v%d, v%d' % (sq + 1, sq))
            e('v_permlane16_swap_b32 v%d, v%d' % (sq, sq + 1))
            e('v_add_f32 v%d, v%d, v%d' % (sq, sq, sq + 1))
            e('s_mov_b32 exec_lo, 0xffff\ns_mov_b32 exec_hi, 0xffff')
            st(sq, vStA, SWS, 6, 0, 'o', AUX, n=1)
            e('s_mov_b64 exec, -1')
            if halo:
                Lh = lab('Lhl')
                e('s_cmp_lg_u32 s%d, 3\ns_cbranch_scc1 %s' % (sW, Lh))
                e('s_cmp_lt_u32 s%d, 8\ns_cbranch_scc1 %s' % (sM, Lh))
                e('s_add_u32 s6, s%d, 1\ns_lshl_b32 s6, s6, 15\ns_add_u32 s6, s6, 0x%x\ns_add_u32 s4, s6, s5\ns_add_u32 s6, s6, 16384' % (sTeam, HALO))
                st(pk, vL16, SWS, 4, 0, None, ' sc0 sc1', track=False)
                st(pk + 4, vL16, SWS, 4, 1024, None, ' sc0 sc1', track=False)
                e('s_mov_b32 exec_lo, 0xffff\ns_mov_b32 exec_hi, 0xffff')
                st(sq, vStA, SWS, 6, 0, None, ' sc0 sc1', n=1, track=False)
                e('s_waitcnt vmcnt(0)')
                e('v_mov_b32 v%d, 1' % x0)
                e('s_lshl_b32 s4, s%d, 2\ns_add_u32 s4, s4, s%d\ns_add_u32 s4, s4, %d' % (sCs, sFlag, 256 + 128))
                e('s_mov_b64 exec, 1')
                e('buffer_store_dword v%d, off, %s, s4 sc0 sc1' % (x0, SWS), None, False)
                e('s_mov_b64 exec, -1')
                e.label(Lh)
        stamp('end')
        for r_, n_ in ((XR, 4 * NR), (acc, 32), (rd, 16), (pk, 8), (sq, 4)): V.put(r_, n_)

    def P3(first):
        acc = V.get(48); WF = V.get(48); XR = V.get(64); stt = V.get(8); mr = V.get(4)
        wb = V.get(2)
        if first: cacc = V.get(8); cw = V.get(8); cb = V.get(2)
        A = lambda a, c: acc + (a * 6 + c) * 4
        wf = lambda ks, c: WF + ((ks & 1) * 6 + c) * 4
        xr = lambda ks, a: XR + ((ks % 8) * 2 + a) * 4
        soff_reset()
        LOOK = 5
        e('s_lshl_b32 s%d, s%d, 14\ns_add_u32 s%d, s%d, 0x%x' % (sB[2], sTile, sB[2], sB[2], X1F))

        def xload(ks):
            return [lambda a=a: ld(xr(ks, a), vL16, SWS, sB[2], a * 16384 + ks * 1024, ('X', ks)) for a in range(2)]
        for ks in range(LOOK):
            for f in xload(ks): f()
        e('s_lshl_b32 s4, s%d, 10\ns_add_u32 s4, s4, 0x%x' % (sTile, ST1))
        ld(stt, vL16, SWS, 4, 0, 'st')
        ld(stt + 4, vL16, SWS, 4, 1024, 'st')
        if first:
            e('v_add_u32 v%d, 0x%x, v%d' % (wb, SLOT0, vL16))
            e('s_lshl_b32 s4, s%d, 10\ns_add_u32 s4, s4, 2048' % sW)
            e('v_add_u32 v%d, s4, v%d' % (cb, wb))
            e('v_add_u32 v%d, s%d, v%d' % (cb + 1, sW1l, wb))
            e('s_mul_i32 s%d, s%d, 43\ns_mul_i32 s4, s%d, 11\ns_add_u32 s%d, s%d, s4\ns_lshl_b32 s%d, s%d, 12\ns_add_u32 s%d, s%d, 0x%x' % (sB[0], sCs, sW, sB[0], sB[0], sB[0], sB[0], sB[0], sB[0], W2T))
            e('s_add_u32 s4, s%d, 40960\ns_cmp_eq_u32 s%d, 3\ns_cselect_b32 s%d, 0x%x, s4' % (sB[0], sW, sB[1], OOB))
        else:
            e('v_add_u32 v%d, 49152, v%d' % (wb + 1, vL16))

        def waddr(ks):
            if first: return wb, (ks % 10) * 6144
            return (vL16, ks * 6144) if ks < 8 else (wb + 1, (ks - 8) * 6144)

        def wreads(ks):
            out = []
            b, o = waddr(ks)
            for c in range(6):
                out.append(lambda c=c: e('ds_read_b128 %s, v%d offset:%d' % (vr(wf(ks, c), 4), b, o + c * 1024), ('w', ks, c)))
            return out

        def creads(ks):
            o = (ks % 10) * 6144
            out = [lambda: e('ds_read_b128 %s, v%d offset:%d' % (vr(cw, 4), cb, o), ('c', ks))]
            if ks & 1: out.append(lambda: e('ds_read_b128 %s, v%d offset:%d' % (vr(cw + 4, 4), cb + 1, o - 6144), ('c', ks)))
            return out

        def w2load(s):
            out = []
            for c in range(4):
                if s < 10: out.append(lambda c=c: ld(64 + 16 * s + 4 * c, vL16, SWS, sB[0], s * 4096 + c * 1024, 'w2', kind='a'))
                else: out.append(lambda c=c: ld(64 + 16 * s + 4 * c, vL16, SWS, sB[1], c * 1024, 'w2', kind='a'))
            return out
        e.wait(vm=['w1a', 'w1b'])
        e('s_barrier')
        for f in wreads(0): f()
        for ks in range(16):
            fill = []
            if first and ks in (4, 6):
                e.wait(lg='all')
                e('s_barrier')
                fill += w1_issue([10, 11, 12, 13] if ks == 4 else [14, 15], True, 'w1c')
            if first and ks == 9:
                e.wait(vm='w1c')
                e('s_barrier')
            if first: fill = creads(ks) + fill
            if ks < 15: fill = zipitems(wreads(ks + 1), fill)
            if ks + LOOK < 16: fill = zipitems(fill, xload(ks + LOOK))
            if first and ks >= 11:
                fill = zipitems(fill, w2load(2 * (ks - 11)) + w2load(2 * (ks - 11) + 1))
            if ks == 2:
                e.wait(vm='st')
                fill = zipitems(fill, stats_items(stt, mr))
            if ks == 3: fill = zipitems(fill, stats_items(stt + 4, mr + 2))
            e.wait(vm=('X', ks))
            main = []
            for c in range(6):
                for a in range(2):
                    def f(c=c, a=a):
                        if a == 0 and c in (0, 3): e.wait(lg=('w', ks, c + 2))
                        mfma(A(a, c), wf(ks, c), xr(ks, a), None if ks == 0 else A(a, c))
                    main.append(f)
            weave(main, fill, 0, 2 if len(fill) > 12 else 1)
            if first:
                e.wait(lg=('c', ks))
                mfma(cacc, cw, vOnes, None if ks == 0 else cacc)
                if ks & 1: mfma(cacc + 4, cw + 4, vOnes, None if ks == 1 else cacc + 4)
        stamp('p3gemm')
        if first:
            for f in w2load(10): f()
            e('s_lshl_b32 s4, s%d, 6' % sW)
            e('v_add_u32 v%d, s4, v%d' % (x0, vCsA))
            e('s_lshr_b32 s4, s%d, 1\ns_mul_i32 s4, s4, 6\ns_and_b32 s5, s%d, 1\ns_add_u32 s4, s4, s5\ns_lshl_b32 s4, s4, 6' % (sW, sW))
            e('v_add_u32 v%d, s4, v%d' % (x2, vCsA))
            e('s_mov_b32 exec_lo, 0x00010001\ns_mov_b32 exec_hi, 0x00010001')
            e('ds_write_b128 v%d, %s offset:%d' % (x0, vr(cacc, 4), 512 + 128))
            e('ds_write_b128 v%d, %s offset:512' % (x2, vr(cacc + 4, 4)))
            e('s_mov_b64 exec, -1')
            e.wait(lg='all')
            e('s_barrier')
        cs = WF
        for j in (2, 3, 4, 5, 0, 1, 6, 7):
            e('ds_read_b128 %s, v%d offset:%d' % (vr(cs + 4 * j, 4), vCsA, 512 + j * 64), ('cs', j))
        e('s_mul_i32 s4, s%d, 43\ns_add_u32 s4, s4, s%d\ns_lshl_b32 s4, s4, 10\ns_add_u32 s4, s4, 0x%x\ns_add_u32 s5, s4, %d' % (sTile, sU0, HF, 43 * 1024))
        e('s_cmp_lt_u32 s%d, 11\ns_cselect_b32 s6, s4, 0x%x\ns_cselect_b32 s7, s5, 0x%x' % (sM, OOB, OOB))
        for j in (1, 2, 0):
            e.wait(lg=('cs', 7 if j == 0 else 2 * j + 1))
            if j == 0:
                for b in range(2):
                    for h in range(2):
                        e('v_pk_add_f32 %s, %s, %s' % (vr(cs + 4 * b + 2 * h, 2), vr(cs + 4 * b + 2 * h, 2), vr(cs + 24 + 4 * b + 2 * h, 2)))
            for a in range(2):
                o = XR + (a * 3 + j) * 4
                for f in zipitems(ln_tile(A(a, 2 * j), cs + 8 * j, mr + 2 * a, o, relu=True), ln_tile(A(a, 2 * j + 1), cs + 8 * j + 4, mr + 2 * a, o + 2, relu=True)): f()
                st(o, vL16, SWS, (6 if j == 2 else 4) + a, j * 1024, 'o', AUX)
        stamp('p3end')
        for r_, n_ in ((acc, 48), (WF, 48), (XR, 64), (stt, 8), (mr, 4), (wb, 2)): V.put(r_, n_)
        if first: V.put(cacc, 8); V.put(cw, 8); V.put(cb, 2)

    def stop(name):
        if cfg.stop == name:
            e('s_branch L_end' + sfx)

    def p2_extra():
        e('s_barrier')
        soff_reset()
        for f in w1_issue([4, 5, 6, 7, 8, 9], True, 'w1b'): f()

    P1(True); stop('p1')
    team_sync(1, 'o')
    PK(4, 0, OF, 16384, X1F, ST1, False, False, extra=p2_extra); stop('p2')
    team_sync(2, 'o')
    P3(True); stop('p3')
    team_sync(3, 'o')
    PK(11, 64, HF, 43 * 1024, X2F, ST2, False, True); stop('p4')
    team_sync(4, 'o')
    P1(False); stop('p1b')
    team_sync(5, 'o')
    PK(4, 0, OF, 16384, X1F, ST1, False, False); stop('p2b')
    team_sync(6, 'o')
    P3(False); stop('p3b')
    team_sync(7, 'o')
    PK(11, 64, HF, 43 * 1024, None, None, True, False)
    e.label('L_end' + sfx)
    if cfg.stamps:
        e('s_waitcnt vmcnt(0) lgkmcnt(0)')
        e('s_mov_b64 exec, -1')
        e('s_memtime s[4:5]\ns_memrealtime s[6:7]\ns_waitcnt lgkmcnt(0)')
        flush_stamps()
        e('v_writelane_b32 v255, s4, 62\nv_writelane_b32 v255, s6, 63\nv_writelane_b32 v255, s78, 61')
        e('v_and_b32 v2, 63, v0\nv_lshlrev_b32 v2, 2, v2')
        e('s_lshl_b32 s4, s2, 2\ns_add_u32 s4, s4, s%d\ns_lshl_b32 s4, s4, 8\ns_add_u32 s4, s4, 0x%x' % (sW, STAMPS))
        e('buffer_store_dword v255, v2, %s, s4 offen' % SWS)
    if mode == 'f': e.label('L_exit')
    e('s_endpgm')
    return e, V.maxused, stamp_names


HEADER = open('interleave_layers__sliding_local_dilated__dense_activation_relu__prompt.s.ref').read().split('; Override')[0]


def generate(cfg):
    ef, vmax, names = build('f', cfg)
    es, _, _ = build('s', cfg)
    fast = ef.text(); slow = es.text()
    slow = slow[slow.index('L_fork_s:'):]
    s = HEADER
    s += '; @launch grid=(256,1,1) block=(256,1,1) lds=%d\n' % LDS_BYTES
    s += '.amdgcn_target "amdgcn-amd-amdhsa--gfx950"\n.text\n'
    s += '.globl %s\n.p2align 8\n.type %s,@function\n%s:\n' % (NAME, NAME, NAME)
    s += fast + 'L_fast_end:\n' + slow
    s += '.section .rodata,"a"\n.p2align 6\n.amdhsa_kernel %s\n' % NAME
    s += '  .amdhsa_next_free_vgpr 512\n  .amdhsa_next_free_sgpr 102\n  .amdhsa_accum_offset 256\n'
    s += '  .amdhsa_group_segment_fixed_size 0\n  .amdhsa_kernarg_size 72\n  .amdhsa_user_sgpr_count 2\n'
    s += '  .amdhsa_user_sgpr_kernarg_segment_ptr 1\n  .amdhsa_system_sgpr_workgroup_id_x 1\n'
    s += '  .amdhsa_float_denorm_mode_32 3\n.end_amdhsa_kernel\n'
    import subprocess, tempfile, os
    d = tempfile.mkdtemp()
    open(d + '/a.s', 'w').write(s.replace('CODE_BYTES', '0x12345'))
    subprocess.check_call(['clang', '-x', 'assembler', '-target', 'amdgcn-amd-amdhsa', '-mcpu=gfx950', '-c', d + '/a.s', '-o', d + '/a.o'])
    sy = subprocess.check_output(['llvm-readelf', '-s', d + '/a.o']).decode()
    size = [int(l.split()[1], 16) for l in sy.split('\n') if l.endswith(' L_fast_end')][0]
    s = s.replace('CODE_BYTES', '0x%x' % (size & ~127))
    return s, dict(vmax=vmax, nins=ef.nins, nops=ef.nops, stamps=names, size=size)


if __name__ == '__main__':
    cfg = Cfg()
    out = sys.argv[1]
    for a in sys.argv[2:]:
        k, v = a.split('=')
        setattr(cfg, k, {'1': True, '0': False}.get(v, v))
    s, info = generate(cfg)
    open(out, 'w').write(s)
    print(info)
```

```python
import sys, re
import gen
def warm_body(kind):
    s = '''    s_cmp_ge_u32 s2, 256
    s_cbranch_scc1 Lw_end%s
    s_load_dwordx16 s[4:19], s[0:1], 0
    s_load_dwordx2 s[20:21], s[0:1], 64
    s_lshl_b32 s3, s2, 8
    v_add_u32 v1, s3, v0
    s_waitcnt lgkmcnt(0)
''' % kind
    if kind in 'IA':
        s += '    v_lshlrev_b32 v2, 5, v1\n'
        for p, size in ((4, 2 << 20), (6, 512 * 3072), (8, 512 * 1024), (12, 512 * 2752), (14, 1376 * 1024)):
            s += '    s_mov_b32 s24, s%d\n    s_mov_b32 s25, s%d\n    s_mov_b32 s26, 0x%x\n    s_mov_b32 s27, 0x20000\n    buffer_load_dword v%d, v2, s[24:27], 0 offen\n' % (p, p + 1, size, 8 + p)
    if kind in 'TA':
        s += '    v_and_b32 v3, 31, v0\n    v_lshlrev_b32 v3, 20, v3\n'
        for p, size in ((20, gen.WS_SIZE), (16, 2 << 20), (18, 256), (4, 2 << 20), (6, 512 * 3072), (8, 512 * 1024), (12, 512 * 2752), (14, 1376 * 1024)):
            s += '    s_mov_b32 s24, s%d\n    s_mov_b32 s25, s%d\n    s_mov_b32 s26, 0x%x\n    s_mov_b32 s27, 0x20000\n    buffer_load_dword v%d, v3, s[24:27], 0 offen\n' % (p, p + 1, size, 32 + p)
    s += '    s_waitcnt vmcnt(0)\nLw_end%s:\n    s_endpgm\n' % kind
    return s
def variant(s, order):
    main = '; @launch kernel=%s grid=(256,1,1) block=(256,1,1) lds=163840\n' % gen.NAME
    lines = ''
    for c in order:
        if c == 'M': lines += main
        elif c == 'E': lines += '; @launch kernel=kE_kernel grid=(1,1,1) block=(64,1,1) lds=0\n'
        else: lines += '; @launch kernel=k%s_kernel grid=(256,1,1) block=(256,1,1) lds=100000\n' % c
    s = re.sub(r'; @launch grid=.*\n', lambda m: lines, s)
    for c in sorted(set(order) - {'M'}):
        n = 'k%s_kernel' % c
        body = '    s_endpgm\n' if c in 'EF' else warm_body(c)
        s = s.replace('.section .rodata,"a"', '.globl %s\n.p2align 8\n.type %s,@function\n%s:\n%s.section .rodata,"a"' % (n, n, n, body))
        s += '.p2align 6\n.amdhsa_kernel %s\n  .amdhsa_next_free_vgpr 64\n  .amdhsa_next_free_sgpr 32\n  .amdhsa_accum_offset 64\n  .amdhsa_group_segment_fixed_size 0\n  .amdhsa_kernarg_size 72\n  .amdhsa_user_sgpr_count 2\n  .amdhsa_user_sgpr_kernarg_segment_ptr 1\n  .amdhsa_system_sgpr_workgroup_id_x 1\n.end_amdhsa_kernel\n' % n
    return s
if __name__ == '__main__':
    s, info = gen.generate(gen.Cfg())
    for o in sys.argv[1:]:
        open('list_%s.s' % o, 'w').write(variant(s, o))
```
